```python
import torch

def _softmax(x, axis=-1):
    return torch.softmax(x, dim=axis)

def _gelu(x):
    return torch.nn.functional.gelu(x, approximate='tanh')

def _silu(x):
    return torch.nn.functional.silu(x)

def _sigmoid(x):
    return torch.sigmoid(x)

def _layernorm(x, axis=-1, eps=1e-05):
    m = x.mean(dim=axis, keepdim=True)
    v = x.var(dim=axis, keepdim=True, unbiased=False)
    return (x - m) / torch.sqrt(v + eps)

def _scatter_add(tgt, idx, src, axis=0):
    return tgt.clone().index_add_(axis, idx, src)

def _segment_sum(src, seg, n):
    out = torch.zeros((n,) + src.shape[1:], dtype=src.dtype)
    return out.index_add_(0, seg, src)

def _pad(x, pw):
    flat = tuple((v for pair in reversed(pw) for v in pair))
    return torch.nn.functional.pad(x, flat)
kernel_name = 'adaLN_cond__gqa_block_cached__dense_activation_silu__decode'

def setup_inputs():

    _w = lambda a: (lambda t: t.to(torch.bfloat16) if t.is_floating_point() else t)(torch.as_tensor(a))

    def _A_setup():
        B, Sq, D = (1, 1, 512)
        Hq, Hkv, Sk, Dh = (32, 8, 65536, 128)
        assert Hq % Hkv == 0, (Hq, Hkv)
        return {'x': _w((lambda *s: torch.randn(*s, dtype=torch.bfloat16) * 0.1)(B, Sq, D)), 'k_cache': _w((lambda *s: torch.randn(*s, dtype=torch.bfloat16) * 0.8)(B, Hkv, Sk, Dh)), 'v_cache': _w((lambda *s: torch.randn(*s, dtype=torch.bfloat16) * 3.2)(B, Hkv, Sk, Dh)), 'wq': _w((lambda *s: torch.randn(*s, dtype=torch.bfloat16) * 0.8)(D, Hq * Dh) * D ** (-0.5)), 'wo': _w((lambda *s: torch.randn(*s, dtype=torch.bfloat16) * 3.2)(Hq * Dh, D) * (Hq * Dh) ** (-0.5))}
    _A_in = _A_setup()

    def _B_setup():
        B, S, D, F = (1, 1, 512, 1792)
        return {'x': _w((lambda *s: torch.randn(*s, dtype=torch.bfloat16) * 0.1)(B, S, D)), 'w1': _w((lambda *s: torch.randn(*s, dtype=torch.bfloat16) * 12.8)(D, F) * D ** (-0.5)), 'w2': _w((lambda *s: torch.randn(*s, dtype=torch.bfloat16) * 12.8)(F, D) * F ** (-0.5))}
    _B_in = _B_setup()
    return {'A_x': _A_in['x'], 'A_k_cache': _A_in['k_cache'], 'A_v_cache': _A_in['v_cache'], 'A_wq': _A_in['wq'], 'A_wo': _A_in['wo'], 'B_x': _B_in['x'], 'B_w1': _B_in['w1'], 'B_w2': _B_in['w2'], 'c': _w((lambda *s: torch.randn(*s, dtype=torch.bfloat16) * 0.2)(1, 512) * 8.0), 'w_mod': _w((lambda *s: torch.randn(*s, dtype=torch.bfloat16) * 0.2)(512, 6 * 512) * 512 ** (-0.5) * 8.0)}

def reference(A_x, A_k_cache, A_v_cache, A_wq, A_wo, B_x, B_w1, B_w2, c, w_mod):

    def _A_ref(x, k_cache, v_cache, wq, wo):
        B, Sq, D = x.shape
        Hq, Dh = (32, 128)
        Hkv = k_cache.shape[1]
        rep = Hq // Hkv
        q = (lambda x, *d: x.permute(*d))((x @ wq).reshape(B, Sq, Hq, Dh), 0, 2, 1, 3)
        k = (lambda x, n, axis: torch.repeat_interleave(x, n, dim=axis))(k_cache, rep, axis=1)
        v = (lambda x, n, axis: torch.repeat_interleave(x, n, dim=axis))(v_cache, rep, axis=1)
        scores = torch.einsum('bhqd,bhkd->bhqk', q, k) * Dh ** (-0.5)
        p = _softmax(scores, axis=-1)
        o = torch.einsum('bhqk,bhkd->bhqd', p, v)
        return (lambda x, *d: x.permute(*d))(o, 0, 2, 1, 3).reshape(B, Sq, Hq * Dh) @ wo

    def _B_ref(x, w1, w2):
        h = torch.einsum('bsd,df->bsf', x, w1)
        h = _silu(h)
        out = torch.einsum('bsf,fd->bsd', h, w2)
        return out
    x = A_x
    mod = (_silu(c) @ w_mod).reshape(c.shape[0], 6, 1, -1)
    sa, ca, ga, sb, cb, gb = (mod[:, 0].clone(), mod[:, 1].clone(), mod[:, 2].clone(), mod[:, 3].clone(), mod[:, 4].clone(), mod[:, 5].clone())
    h = _layernorm(x, axis=-1) * (1 + ca) + sa
    x = x + ga * _A_ref(h, A_k_cache, A_v_cache, A_wq, A_wo)
    h = _layernorm(x, axis=-1) * (1 + cb) + sb
    x = x + gb * _B_ref(h, B_w1, B_w2)
    return x
```

```python
import re

TRANS = ("v_exp_f32", "v_log_f32", "v_rcp_f32", "v_rsq_f32", "v_sqrt_f32", "v_sin_f32", "v_cos_f32")

_reg_re = re.compile(r"\b([vas])(\d+)\b|\b([vas])\[(\d+):(\d+)\]|\b(vcc|exec|m0|scc)\b")


def regs_of(tok):
    out = []
    for m in _reg_re.finditer(tok):
        if m.group(1):
            out.append((m.group(1), int(m.group(2))))
        elif m.group(3):
            for i in range(int(m.group(4)), int(m.group(5)) + 1):
                out.append((m.group(3), i))
        else:
            out.append((m.group(6), 0))
    return out


def split_ops(s):
    ops, depth, cur = [], 0, ""
    for ch in s:
        if ch == "[":
            depth += 1
        elif ch == "]":
            depth -= 1
        if ch == "," and depth == 0:
            ops.append(cur.strip())
            cur = ""
        else:
            cur += ch
    if cur.strip():
        ops.append(cur.strip())
    return ops


class Ins:
    def __init__(self, text):
        self.text = text
        t = text.split(";")[0].strip()
        parts = t.split(None, 1)
        self.op = parts[0]
        rest = parts[1] if len(parts) > 1 else ""
        ops = split_ops(rest)
        self.mods = ""
        if ops:
            last = ops[-1].split(None, 1)
            if len(last) > 1:
                ops[-1] = last[0]
                self.mods = last[1]
        self.ops = ops
        op = self.op
        self.is_valu = op.startswith("v_") and not op.startswith("v_mfma")
        self.is_mfma = op.startswith("v_mfma")
        self.is_salu = op.startswith("s_")
        self.is_vmem = op.startswith(("buffer_", "global_", "flat_"))
        self.is_ds = op.startswith("ds_")
        self.is_dpp = "_dpp" in op or "row_" in self.mods or "quad_perm" in self.mods
        self.is_trans = op.replace("_e32", "").replace("_e64", "") in TRANS
        self.is_permlane = op.startswith("v_permlane")
        self.is_readlane = op.startswith(("v_readlane", "v_readfirstlane"))
        self.w, self.r = set(), set()
        self.srcc = set()
        self.srcab = set()
        R = lambda i: regs_of(ops[i]) if i < len(ops) else []
        if self.is_mfma:
            self.w |= set(R(0))
            self.srcab = set(R(1)) | set(R(2))
            self.srcc = set(R(3))
            self.r |= self.srcab | self.srcc
        elif self.is_permlane:
            self.w |= set(R(0)) | set(R(1))
            self.r |= set(R(0)) | set(R(1))
        elif self.is_valu:
            if op.startswith("v_cmp"):
                self.w |= set(R(0))
                for i in range(1, len(ops)):
                    self.r |= set(R(i))
            else:
                self.w |= set(R(0))
                start = 1
                if op.startswith(("v_add_co", "v_sub_co", "v_addc_co", "v_subb_co", "v_div_scale", "v_mad_u64")):
                    self.w |= set(R(1))
                    start = 2
                for i in range(start, len(ops)):
                    self.r |= set(R(i))
                if op.startswith(("v_fmac", "v_pk_fmac", "v_dot2c", "v_writelane")) or ("bank_mask" in self.mods and "bank_mask:0xf" not in self.mods):
                    self.r |= set(R(0)) if op.startswith(("v_fmac", "v_pk_fmac", "v_dot2c")) else set()
                if op.startswith("v_cndmask") and len(ops) == 3:
                    self.r.add(("vcc", 0))
        elif self.is_vmem:
            if "store" in op:
                for i in range(len(ops)):
                    self.r |= set(R(i))
            elif "atomic" in op:
                if op.startswith("global_") and "sc0" in self.mods:
                    self.w |= set(R(0))
                    for i in range(1, len(ops)):
                        self.r |= set(R(i))
                else:
                    for i in range(len(ops)):
                        self.r |= set(R(i))
                    if "sc0" in self.mods:
                        self.w |= set(R(0))
            else:
                if " lds" in (" " + self.mods) or "_lds_" in op:
                    for i in range(len(ops)):
                        self.r |= set(R(i))
                    self.r.add(("m0", 0))
                else:
                    self.w |= set(R(0))
                    for i in range(1, len(ops)):
                        self.r |= set(R(i))
        elif self.is_ds:
            if op.startswith(("ds_write", "ds_add_f32", "ds_add_u32", "ds_max", "ds_min")) and "rtn" not in op:
                for i in range(len(ops)):
                    self.r |= set(R(i))
            else:
                self.w |= set(R(0))
                for i in range(1, len(ops)):
                    self.r |= set(R(i))
        elif self.is_salu:
            if op.startswith(("s_cmp", "s_cbranch", "s_branch", "s_waitcnt", "s_barrier", "s_nop", "s_setprio", "s_endpgm", "s_sleep", "s_setpc")):
                for i in range(len(ops)):
                    self.r |= set(R(i))
            else:
                self.w |= set(R(0))
                for i in range(1, len(ops)):
                    self.r |= set(R(i))
        self.ws = 1
        if op == "s_nop":
            self.ws = int(ops[0], 0) + 1
        self.wide_store = self.is_vmem and "store" in op and op.endswith(("x3", "x4"))


def is_vec(r):
    return r[0] in ("v", "a")


def is_sreg(r):
    return r[0] in ("s", "vcc")


def need(prev, cur):
    n = 0
    pw_v = {r for r in prev.w if is_vec(r)}
    pw_s = {r for r in prev.w if is_sreg(r)}
    if prev.is_valu:
        if cur.is_dpp and pw_v & cur.r:
            n = max(n, 2)
        if cur.is_mfma and pw_v & cur.r:
            n = max(n, 2)
        if cur.is_permlane and pw_v & cur.r:
            n = max(n, 2)
        if cur.is_readlane and pw_v & cur.r:
            n = max(n, 1)
        if prev.is_trans and (pw_v & cur.r) and not cur.is_trans:
            n = max(n, 1)
        if prev.is_trans and (pw_v & cur.r) and cur.is_trans:
            n = max(n, 1)
        if pw_s:
            if (cur.is_valu or cur.is_mfma) and pw_s & cur.r:
                n = max(n, 4 if cur.is_readlane or cur.op.startswith("v_writelane") else 2)
            if cur.is_vmem and pw_s & cur.r:
                n = max(n, 5)
            if cur.is_salu and pw_s & cur.r:
                n = max(n, 1)
        if ("exec", 0) in prev.w:
            n = max(n, 5)
    if prev.is_mfma:
        d = prev.w
        if cur.is_mfma:
            if d & cur.srcab:
                n = max(n, 8)
            if d & cur.srcc:
                if cur.srcc == d:
                    pass
                else:
                    n = max(n, 6)
            if (d & cur.w) and cur.srcc != d:
                n = max(n, 8)
        elif cur.is_valu or cur.is_vmem or cur.is_ds:
            if d & (cur.r | cur.w):
                n = max(n, 8)
        if (cur.is_valu) and (prev.srcc & cur.w) and not (d & cur.w):
            n = max(n, 3)
    if prev.is_salu and ("m0", 0) in prev.w and ("m0", 0) in cur.r and (cur.is_vmem or cur.is_ds):
        n = max(n, 1)
    if prev.wide_store:
        data = {r for r in prev.r if is_vec(r)}
        if data & cur.w:
            n = max(n, 2 if cur.is_valu else 1)
    return n


class K:
    def __init__(self):
        self.lines = []
        self.hist = []
        self.nnops = 0

    def raw(self, s):
        self.lines.append(s)

    def label(self, name):
        self.lines.append(f"{name}:")

    def comment(self, s):
        self.lines.append(f"    ; {s}")

    def fence(self, n=8):
        dist = 0
        req = 0
        for p in reversed(self.hist):
            if p.is_mfma:
                req = max(req, 8 - dist)
            elif p.is_valu:
                req = max(req, (5 if any(is_sreg(r) for r in p.w) else 2) - dist)
            dist += p.ws
            if dist > 10:
                break
        if req > 0:
            self._nop(req)

    def _nop(self, n):
        while n > 0:
            k = min(n, 16)
            i = Ins(f"s_nop {k - 1}")
            self.lines.append(f"    s_nop {k - 1}")
            self.hist.append(i)
            self.nnops += 1
            n -= k

    def __call__(self, text):
        for t in text.strip().split("\n"):
            t = t.strip()
            if not t:
                continue
            if t.endswith(":"):
                self.label(t[:-1])
                continue
            if t.startswith(";"):
                self.lines.append("    " + t)
                continue
            cur = Ins(t)
            dist = 0
            req = 0
            for p in reversed(self.hist):
                nd = need(p, cur)
                if nd - dist > req:
                    req = nd - dist
                dist += p.ws
                if dist >= 12:
                    break
            if req > 0:
                self._nop(req)
            self.lines.append("    " + t)
            self.hist.append(cur)
            if len(self.hist) > 24:
                self.hist = self.hist[-24:]

    def text(self):
        return "\n".join(self.lines) + "\n"
```

```python
import math
import struct
import sys

sys.path.insert(0, "code")
from asmdsl import K

NAME = "adaLN_cond__gqa_block_cached__dense_activation_silu__decode"


def f2u(x):
    return struct.unpack("<I", struct.pack("<f", x))[0]


WS_EPOCH = 0x0
WS_CNT = 0x1000
WS_MOD = 0x10000
WS_Q = 0x14000
WS_ML = 0x18000
WS_O1 = 0x20000
WS_E2 = 0x120000
WS_E3 = 0x130000
WS_STAMP = 0x200000

L_SCR = 0
L_QF = L_SCR
L_RED = L_SCR + 1024
L_MM = L_RED + 16384
L_LL = L_MM + 128
L_RED2 = L_MM + 256
L_X2 = L_RED2
L_W = 22528
assert L_RED2 + 4096 <= L_W
LDS_TOTAL = L_W + 131072

NSTAT = 3
TILES = 2048
POOL0 = 32 * 8 * NSTAT
SUBPOOL = (TILES - POOL0) // 4
POLL_LIMIT = 200000

SEL_LO, SEL_HI = "s14", "s15"


def gen(stamps=False):
    k = K()
    uid = [0]

    def lab(p):
        uid[0] += 1
        return f"L_{p}_{uid[0]}"

    def stamp(idx):
        if not stamps:
            return
        k("s_memrealtime s[92:93]")
        k("s_waitcnt lgkmcnt(0)")
        k("v_mov_b32 v30, s92")
        k(f"v_mov_b32 v31, s94")
        k("s_mov_b64 exec, 1")
        k(f"global_store_dword v31, v30, s[8:9] offset:{idx * 4}")
        k("s_mov_b64 exec, -1")

    def allreduce(v, t, op, steps=("r1", "r2", "r4", "r8", "x16", "x32")):
        for s in steps:
            if s[0] == "r":
                k(f"{op}_dpp {v}, {v}, {v} row_ror:{s[1:]} row_mask:0xf bank_mask:0xf")
            else:
                k(f"v_mov_b32 {t}, {v}")
                k(f"v_permlane{s[1:]}_swap_b32 {v}, {t}")
                k(f"{op} {v}, {v}, {t}")

    def check_tags(tags, tmn, tmx, retry):
        def chain(op3, op2, dst):
            rest = list(tags)
            if len(rest) >= 3:
                k(f"{op3} {dst}, {rest[0]}, {rest[1]}, {rest[2]}")
                rest = rest[3:]
            else:
                k(f"{op2} {dst}, {rest[0]}, {rest[1]}")
                rest = rest[2:]
            while len(rest) >= 2:
                k(f"{op3} {dst}, {dst}, {rest[0]}, {rest[1]}")
                rest = rest[2:]
            if rest:
                k(f"{op2} {dst}, {dst}, {rest[0]}")
        if len(tags) == 1:
            k(f"v_cmp_ne_u32 vcc, s6, {tags[0]}")
            k("s_nop 0")
            k("s_or_b64 s[12:13], vcc, vcc")
        else:
            chain("v_min3_u32", "v_min_u32", tmn)
            chain("v_max3_u32", "v_max_u32", tmx)
            k(f"v_cmp_ne_u32 vcc, s6, {tmn}")
            k(f"v_cmp_ne_u32 s[12:13], s6, {tmx}")
            k("s_or_b64 s[12:13], s[12:13], vcc")
        k(f"s_cbranch_scc1 {retry}")

    def poll_begin():
        top = lab("poll")
        go = lab("go")
        k("s_mov_b32 s7, 0")
        k(f"s_branch {go}")
        k.label(top)
        k("s_add_u32 s7, s7, 1")
        k(f"s_cmp_ge_u32 s7, {POLL_LIMIT}")
        k("s_cbranch_scc1 L_end")
        k.label(go)
        return top

    def perm_frag(dst, src, i):
        sel = SEL_HI if (i & 1) else SEL_LO
        for jp in range(4):
            lo = src + 4 * (2 * jp) + (i >> 1)
            hi = src + 4 * (2 * jp + 1) + (i >> 1)
            k(f"v_perm_b32 v{dst + jp}, v{hi}, v{lo}, {sel}")

    def gemv_tile(src, afrag, dreg, btmp):
        sets = [btmp, btmp + 4, btmp + 8]
        perm_frag(sets[0], src, 0)
        perm_frag(sets[1], src, 1)
        for i in range(8):
            if i + 2 < 8:
                perm_frag(sets[(i + 2) % 3], src, i + 2)
            b = sets[i % 3]
            k(f"v_mfma_f32_16x16x32_bf16 v[{dreg + 4 * i}:{dreg + 4 * i + 3}], v[{afrag}:{afrag + 3}], v[{b}:{b + 3}], 0")

    def unpack8(src, dst):
        for i in range(4):
            k(f"v_lshlrev_b32 v{dst + 2 * i}, 16, v{src + i}")
            k(f"v_and_b32 v{dst + 2 * i + 1}, 0xffff0000, v{src + i}")

    def unpack_gr(srcs, dst):
        for i, s in enumerate(srcs):
            k(f"v_lshlrev_b32 v{dst + 2 * i}, 16, v{s}")
            k(f"v_and_b32 v{dst + 2 * i + 1}, 0xffff0000, v{s}")

    def silu_inplace(regs, tmp):
        for r, t in zip(regs, tmp):
            k(f"v_mul_f32 v{t}, s58, v{r}")
        for r, t in zip(regs, tmp):
            k(f"v_exp_f32 v{t}, v{t}")
        for r, t in zip(regs, tmp):
            k(f"v_add_f32 v{t}, 1.0, v{t}")
        for r, t in zip(regs, tmp):
            k(f"v_rcp_f32 v{t}, v{t}")
        for r, t in zip(regs, tmp):
            k(f"v_mul_f32 v{r}, v{r}, v{t}")

    def pack8(src, dst):
        for i in range(4):
            k(f"v_cvt_pk_bf16_f32 v{dst + i}, v{src + 2 * i}, v{src + 2 * i + 1}")

    k.raw(f"; @launch grid=(256,1,1) block=(512,1,1) lds={LDS_TOTAL}")
    k.raw('.amdgcn_target "amdgcn-amd-amdhsa--gfx950"')
    k.raw(".text")
    k.raw(f".globl {NAME}_kernel")
    k.raw(".p2align 8")
    k.raw(f".type {NAME}_kernel,@function")
    k.label(f"{NAME}_kernel")
    k("s_cmp_ge_u32 s2, 256")
    k("s_cbranch_scc1 L_end")
    k("s_load_dwordx16 s[16:31], s[0:1], 0")
    k("s_load_dwordx8 s[32:39], s[0:1], 64")
    k("s_load_dwordx2 s[8:9], s[0:1], 96")
    k("v_lshrrev_b32 v1, 6, v0")
    k("v_and_b32 v0, 63, v0")
    k("v_readfirstlane_b32 s3, v1")
    k("s_lshr_b32 s4, s2, 5")
    k("s_and_b32 s5, s2, 31")
    k("s_mov_b32 s14, 0x05040100")
    k("s_mov_b32 s15, 0x07060302")
    k(f"s_mov_b32 s56, 0x{f2u((128 ** -0.5) * math.log2(math.e)):08x}")
    k(f"s_mov_b32 s57, 0x{f2u(8.0):08x}")
    k(f"s_mov_b32 s58, 0x{f2u(-math.log2(math.e)):08x}")
    k("v_lshlrev_b32 v1, 4, v0")
    k("v_add_u32 v2, 0x1000, v1")
    k("v_bfe_u32 v3, v0, 2, 2")
    k("v_lshlrev_b32 v3, 8, v3")
    k("v_lshrrev_b32 v28, 4, v0")
    k("v_lshl_add_u32 v3, v28, 6, v3")
    k("v_and_b32 v29, 3, v0")
    k("v_lshl_add_u32 v3, v29, 4, v3")
    k("v_add_u32 v4, 0x1000, v3")
    k("v_and_b32 v29, 15, v0")
    k("v_bfe_u32 v26, v0, 2, 2")
    k("v_mov_b32 v5, 0")
    k("v_mov_b32 v6, 0")
    k("v_mov_b32 v24, 0x0000ffff")
    k("v_mov_b32 v25, 0xffff0000")
    k("v_cmp_eq_u32 vcc, 0, v26")
    k("v_cndmask_b32 v5, v5, v24, vcc")
    k("v_cmp_eq_u32 vcc, 1, v26")
    k("v_cndmask_b32 v5, v5, v25, vcc")
    k("v_cmp_eq_u32 vcc, 2, v26")
    k("v_cndmask_b32 v6, v6, v24, vcc")
    k("v_cmp_eq_u32 vcc, 3, v26")
    k("v_cndmask_b32 v6, v6, v25, vcc")
    k("v_mov_b32 v7, 0xf149f2ca")
    k("v_mov_b32 v8, 0")
    k("v_mov_b32 v9, 0")
    k("v_mov_b32 v10, 0")
    k("v_mov_b32 v11, 1")
    for i in range(32):
        k(f"v_accvgpr_write_b32 a{64 + i}, 0")
    k("v_lshrrev_b32 v27, 3, v29")
    k("v_lshlrev_b32 v27, 5, v27")
    k("v_lshl_add_u32 v27, v28, 3, v27")
    k("v_and_b32 v26, 7, v29")
    k("v_lshlrev_b32 v26, 4, v26")
    k("v_and_b32 v25, 1, v29")
    k("v_lshlrev_b32 v25, 5, v25")
    k("v_lshl_add_u32 v25, v28, 3, v25")
    k("s_waitcnt lgkmcnt(0)")
    k("s_load_dword s6, s[8:9], 0")
    k("s_lshl_b32 s7, s4, 24")
    k("s_add_u32 s40, s18, s7")
    k("s_addc_u32 s41, s19, 0")
    k("s_mov_b32 s42, 0x1000000")
    k("s_mov_b32 s43, 0x20000")
    k("s_add_u32 s44, s20, s7")
    k("s_addc_u32 s45, s21, 0")
    k("s_mov_b32 s46, 0x1000000")
    k("s_mov_b32 s47, 0x20000")
    if stamps:
        k("s_lshl_b32 s94, s2, 3")
        k("s_add_u32 s94, s94, s3")
        k("s_lshl_b32 s94, s94, 6")
        k(f"s_add_u32 s94, s94, {WS_STAMP}")
    stamp(0)
    k("s_mov_b32 s80, 0")
    k("s_mov_b32 s81, 0")
    k("s_cmp_lt_u32 s5, 6")
    k("s_cbranch_scc1 L_roleA")
    k("s_cmp_lt_u32 s5, 14")
    k("s_cbranch_scc1 L_roleB")
    k("s_cmp_lt_u32 s5, 22")
    k("s_cbranch_scc1 L_roleT2")
    k("s_and_b32 s7, s4, 1")
    k("s_sub_u32 s7, 26, s7")
    k("s_cmp_lt_u32 s5, s7")
    k("s_cbranch_scc1 L_roleMLP")
    k("s_branch L_common")

    def stage_finish(ws_off):
        for i in range(8):
            k(f"v_add_f32_dpp v{104 + i}, v{32 + 4 * i + 1}, v{32 + 4 * i} row_ror:8 row_mask:0xf bank_mask:0xf")
        k("v_lshlrev_b32 v112, 5, v0")
        k("s_lshl_b32 s7, s3, 8")
        k(f"s_add_u32 s7, s7, {L_RED}")
        k("v_add_u32 v112, s7, v112")
        k("s_mov_b64 exec, 0xff")
        k("ds_write_b128 v112, v[104:107]")
        k("ds_write_b128 v112, v[108:111] offset:16")
        k("s_mov_b64 exec, -1")
        k("s_waitcnt lgkmcnt(0)")
        k("s_barrier")
        k("s_cmp_lg_u32 s3, 0")
        k("s_cbranch_scc1 L_common")
        k("v_lshlrev_b32 v112, 3, v0")
        for w in range(8):
            k(f"ds_read_b64 v[{32 + 2 * w}:{33 + 2 * w}], v112 offset:{L_RED + w * 256}")
        k("s_lshl_b32 s7, s81, 8")
        k(f"s_add_u32 s7, s7, {ws_off}")
        k("v_add_u32 v113, s7, v112")
        k("s_waitcnt lgkmcnt(0)")
        for w in range(1, 8):
            k(f"v_add_f32 v32, v32, v{32 + 2 * w}")
            k(f"v_add_f32 v33, v33, v{33 + 2 * w}")
        k("v_cvt_pk_bf16_f32 v34, v32, v33")
        k("v_mov_b32 v35, s6")
        k("s_waitcnt vmcnt(0)")
        k("s_mov_b64 exec, 0xffffffff")
        k("global_store_dwordx2 v113, v[34:35], s[8:9] sc1")
        k("s_mov_b64 exec, -1")
        stamp(1)
        k("s_branch L_common")

    k.label("L_roleA")
    k("s_mov_b32 s80, 1")
    k("s_mul_i32 s81, s4, 6")
    k("s_add_u32 s81, s81, s5")
    k("s_mov_b32 s48, s34")
    k("s_mov_b32 s49, s35")
    k(f"s_mov_b32 s50, {512 * 6144}")
    k("s_mov_b32 s51, 0x20000")
    k("s_movk_i32 s7, 6144")
    k("v_mul_lo_u32 v112, v27, s7")
    k("v_add_u32 v112, v112, v26")
    k(f"s_mul_i32 s66, s3, {64 * 6144}")
    k("s_lshl_b32 s7, s81, 7")
    k("s_add_u32 s66, s66, s7")
    k("s_lshl_b32 s7, s3, 6")
    k("v_add_u32 v113, s7, v25")
    k("v_lshlrev_b32 v113, 1, v113")
    k("global_load_dwordx4 v[96:99], v113, s[32:33]")
    for e in range(8):
        k(f"buffer_load_dwordx4 v[{64 + 4 * e}:{67 + 4 * e}], v112, s[48:51], s66 offen nt")
        if e < 7:
            k("s_add_u32 s66, s66, 6144")
    k("s_or_b32 s7, s81, s3")
    k("s_cmp_lg_u32 s7, 0")
    k("s_cbranch_scc1 L_A_nozero")
    k("v_lshlrev_b32 v114, 8, v0")
    k(f"v_add_u32 v114, {WS_CNT}, v114")
    k("s_mov_b64 exec, 0xffffffff")
    k("global_store_dword v114, v10, s[8:9] sc1")
    k("s_mov_b64 exec, -1")
    k("s_waitcnt vmcnt(9)")
    k("s_branch L_A_go")
    k.label("L_A_nozero")
    k("s_waitcnt vmcnt(8)")
    k.label("L_A_go")
    unpack8(96, 104)
    silu_inplace(list(range(104, 112)), list(range(112, 120)))
    pack8(104, 16)
    k("s_waitcnt vmcnt(0) lgkmcnt(0)")
    k("s_add_u32 s6, s6, 1")
    gemv_tile(64, 16, 32, 96)
    stage_finish(WS_MOD)

    k.label("L_roleB")
    k("s_mov_b32 s80, 2")
    k("s_lshl_b32 s81, s4, 3")
    k("s_add_u32 s81, s81, s5")
    k("s_sub_u32 s81, s81, 6")
    k("s_mov_b32 s48, s22")
    k("s_mov_b32 s49, s23")
    k(f"s_mov_b32 s50, {512 * 8192}")
    k("s_mov_b32 s51, 0x20000")
    k("v_lshlrev_b32 v112, 13, v27")
    k("v_add_u32 v112, v112, v26")
    k("s_lshl_b32 s66, s3, 19")
    k("s_lshl_b32 s7, s81, 7")
    k("s_add_u32 s66, s66, s7")
    k("s_lshl_b32 s7, s3, 6")
    k("v_add_u32 v113, s7, v25")
    k("v_lshlrev_b32 v114, 1, v113")
    k("global_load_dwordx4 v[96:99], v1, s[16:17]")
    k("global_load_dwordx4 v[100:103], v114, s[16:17]")
    for e in range(8):
        k(f"buffer_load_dwordx4 v[{64 + 4 * e}:{67 + 4 * e}], v112, s[48:51], s66 offen nt")
        if e < 7:
            k("s_add_u32 s66, s66, 8192")
    k("v_lshlrev_b32 v113, 2, v113")
    k(f"v_add_u32 v113, {WS_MOD}, v113")
    k("s_waitcnt vmcnt(8)")
    unpack8(96, 104)
    k("v_add_f32 v120, v104, v105")
    for i in range(2, 8):
        k(f"v_add_f32 v120, v120, v{104 + i}")
    allreduce("v120", "v121", "v_add_f32")
    k(f"v_mul_f32 v120, 0x{f2u(1.0 / 512):08x}, v120")
    for i in range(8):
        k(f"v_sub_f32 v{104 + i}, v{104 + i}, v120")
    k("v_mul_f32 v122, v104, v104")
    for i in range(1, 8):
        k(f"v_fmac_f32 v122, v{104 + i}, v{104 + i}")
    allreduce("v122", "v121", "v_add_f32")
    k(f"v_mov_b32 v123, 0x{f2u(1e-5):08x}")
    k(f"v_fmac_f32 v123, 0x{f2u(1.0 / 512):08x}, v122")
    k("v_rsq_f32 v123, v123")
    unpack8(100, 104)
    for i in range(8):
        k(f"v_sub_f32 v{104 + i}, v{104 + i}, v120")
    for i in range(8):
        k(f"v_mul_f32 v{104 + i}, v{104 + i}, v123")
    k("s_waitcnt lgkmcnt(0)")
    k("s_add_u32 s6, s6, 1")
    top = poll_begin()
    k("global_load_dwordx4 v[32:35], v113, s[8:9] sc1")
    k("global_load_dwordx4 v[36:39], v113, s[8:9] offset:16 sc1")
    k("global_load_dwordx4 v[40:43], v113, s[8:9] offset:2048 sc1")
    k("global_load_dwordx4 v[44:47], v113, s[8:9] offset:2064 sc1")
    k("s_waitcnt vmcnt(0)")
    check_tags([f"v{33 + 2 * i}" for i in range(8)], "v48", "v49", top)
    unpack_gr([32, 34, 36, 38], 112)
    unpack_gr([40, 42, 44, 46], 120)
    for i in range(8):
        k(f"v_add_f32 v{120 + i}, 1.0, v{120 + i}")
    for i in range(8):
        k(f"v_fma_f32 v{104 + i}, v{104 + i}, v{120 + i}, v{112 + i}")
    pack8(104, 16)
    gemv_tile(64, 16, 32, 96)
    stage_finish(WS_Q)

    k.label("L_roleT2")
    k("s_mov_b32 s80, 3")
    k("s_lshl_b32 s81, s4, 3")
    k("s_add_u32 s81, s81, s5")
    k("s_sub_u32 s81, s81, 14")
    k("s_mov_b32 s48, s24")
    k("s_mov_b32 s49, s25")
    k(f"s_mov_b32 s50, {4096 * 1024}")
    k("s_mov_b32 s51, 0x20000")
    k("v_lshlrev_b32 v112, 13, v28")
    k("v_lshl_add_u32 v112, v29, 4, v112")
    k("s_lshr_b32 s66, s81, 2")
    k("s_lshl_b32 s66, s66, 18")
    k("s_lshl_b32 s7, s3, 15")
    k("s_add_u32 s66, s66, s7")
    k("s_and_b32 s7, s81, 3")
    k("s_lshl_b32 s7, s7, 8")
    k("s_add_u32 s66, s66, s7")
    k("s_lshl_b32 s67, s3, 13")
    k(f"s_add_u32 s67, s67, {L_W}")
    for e in range(8):
        k("s_mov_b32 m0, s67")
        k(f"buffer_load_dwordx4 v112, s[48:51], s66 offen nt lds")
        if e < 7:
            k("s_add_u32 s66, s66, 1024")
            k("s_add_u32 s67, s67, 1024")
    k("s_branch L_common0")

    k.label("L_roleMLP")
    k("s_mov_b32 s80, 4")
    k("s_lshr_b32 s81, s4, 1")
    k("s_mul_i32 s81, s81, 7")
    k("s_and_b32 s7, s4, 1")
    k("s_lshl_b32 s7, s7, 2")
    k("s_add_u32 s81, s81, s7")
    k("s_add_u32 s81, s81, s5")
    k("s_sub_u32 s81, s81, 22")
    k("s_mov_b32 s48, s28")
    k("s_mov_b32 s49, s29")
    k(f"s_mov_b32 s50, {512 * 3584}")
    k("s_mov_b32 s51, 0x20000")
    k("s_mov_b32 s52, s30")
    k("s_mov_b32 s53, s31")
    k(f"s_mov_b32 s54, {1792 * 1024}")
    k("s_mov_b32 s55, 0x20000")
    k("s_movk_i32 s7, 3584")
    k("v_mul_lo_u32 v112, v27, s7")
    k("v_add_u32 v112, v112, v26")
    k("v_lshlrev_b32 v113, 10, v27")
    k("v_add_u32 v113, v113, v26")
    k(f"s_mul_i32 s66, s3, {64 * 3584}")
    k("s_lshl_b32 s7, s81, 7")
    k("s_add_u32 s66, s66, s7")
    k("s_lshl_b32 s67, s3, 13")
    k(f"s_add_u32 s67, s67, {L_W}")
    for e in range(8):
        k("s_mov_b32 m0, s67")
        k(f"buffer_load_dwordx4 v112, s[48:51], s66 offen nt lds")
        if e < 7:
            k("s_add_u32 s66, s66, 3584")
            k("s_add_u32 s67, s67, 1024")
    k("s_lshl_b32 s66, s81, 16")
    k("s_lshl_b32 s7, s3, 7")
    k("s_add_u32 s66, s66, s7")
    k("s_lshl_b32 s67, s3, 13")
    k(f"s_add_u32 s67, s67, {65536 + L_W}")
    for e in range(8):
        k("s_mov_b32 m0, s67")
        k(f"buffer_load_dwordx4 v113, s[52:55], s66 offen nt lds")
        if e < 7:
            k("s_add_u32 s66, s66, 1024")
            k("s_add_u32 s67, s67, 1024")
    k.label("L_common0")
    k.label("L_common")
    k("s_waitcnt lgkmcnt(0)")
    k("s_sub_u32 s7, s80, 1")
    k("s_cmp_lt_u32 s7, 2")
    k("s_cbranch_scc1 L_tagok")
    k("s_add_u32 s6, s6, 1")
    k.label("L_tagok")
    k(f"s_mul_i32 s66, s5, {8 * NSTAT}")
    k("s_add_u32 s66, s66, s3")
    k("s_lshl_b32 s66, s66, 13")
    k("s_add_u32 s67, s66, 0x10000")
    k("s_add_u32 s59, s66, 0x20000")
    k("s_and_b32 s7, s3, 3")
    k(f"s_mul_i32 s62, s7, {SUBPOOL}")
    k(f"s_add_u32 s62, s62, {POOL0}")
    k("s_lshl_b32 s63, s4, 2")
    k("s_add_u32 s63, s63, s7")
    k("s_lshl_b32 s63, s63, 8")
    k(f"s_add_u32 s63, s63, {WS_CNT}")
    k("v_mov_b32 v10, s63")
    k("s_mov_b32 s63, 1")
    k("s_mov_b32 s60, 1")
    k("s_mov_b32 s61, 1")
    k("s_cmp_eq_u32 s3, 0")
    k("s_cbranch_scc1 L_pollq")

    def issue_k(slot, soff):
        for j in range(8):
            vo = "v3" if j < 4 else "v4"
            k(f"buffer_load_dwordx4 a[{32 * slot + 4 * j}:{32 * slot + 4 * j + 3}], {vo}, s[40:43], {soff} offen offset:{(j % 4) * 1024} nt")

    def issue_v(slot, soff):
        for j in range(8):
            vo = "v1" if j < 4 else "v2"
            b = 64 + 32 * slot + 4 * j
            k(f"buffer_load_dwordx4 v[{b}:{b + 3}], {vo}, s[44:47], {soff} offen offset:{(j % 4) * 1024} nt")

    k.label("L_pf")
    issue_k(0, "s66")
    issue_v(0, "s66")
    issue_k(1, "s67")
    issue_v(1, "s67")
    k("s_cmp_eq_u32 s3, 0")
    k("s_cbranch_scc1 L_haveq")
    k("s_barrier")
    k(f"ds_read_b128 v[12:15], v1 offset:{L_QF}")
    k("s_waitcnt lgkmcnt(0)")
    k("s_branch L_haveq")

    k.label("L_pollq")
    k("s_setprio 3")
    k("v_and_b32 v32, 3, v0")
    k("v_lshlrev_b32 v32, 9, v32")
    k("v_lshl_add_u32 v32, v28, 7, v32")
    k("v_bfe_u32 v33, v0, 2, 2")
    k("v_lshl_add_u32 v32, v33, 5, v32")
    k("s_lshl_b32 s7, s4, 11")
    k(f"s_add_u32 s7, s7, {WS_Q}")
    k("v_add_u32 v32, s7, v32")
    top = poll_begin()
    k("global_load_dwordx4 v[36:39], v32, s[8:9] sc1")
    k("global_load_dwordx4 v[40:43], v32, s[8:9] offset:16 sc1")
    k("s_waitcnt vmcnt(0)")
    check_tags(["v37", "v39", "v41", "v43"], "v44", "v45", top)
    k("v_mov_b32 v12, v36")
    k("v_mov_b32 v13, v38")
    k("v_mov_b32 v14, v40")
    k("v_mov_b32 v15, v42")
    k(f"ds_write_b128 v1, v[12:15] offset:{L_QF}")
    k("s_waitcnt lgkmcnt(0)")
    k("s_barrier")
    k("s_setprio 0")
    k("s_branch L_pf")

    k.label("L_haveq")
    stamp(2)
    k("s_waitcnt vmcnt(8)")
    k("s_branch L_entryA")

    def step(X):
        Y = 1 - X
        nm = "AB"[X]
        k.label(f"L_step{nm}")
        k(f"s_cmp_eq_u32 s{60 + X}, 0")
        k("s_cbranch_scc1 L_loopdone")
        k("s_waitcnt vmcnt(8)")
        k("v_readfirstlane_b32 s7, v9")
        k(f"s_cmp_lt_u32 s7, {SUBPOOL}")
        k(f"s_cselect_b32 s{60 + Y}, 1, 0")
        k("s_add_u32 s7, s7, s62")
        k("s_lshl_b32 s7, s7, 13")
        k(f"s_cmp_eq_u32 s{60 + Y}, 0")
        k("s_cselect_b32 s7, 0x40000000, s7")
        k("s_cmp_eq_u32 s63, 1")
        k("s_cselect_b32 s7, s59, s7")
        k(f"s_cselect_b32 s{60 + Y}, 1, s{60 + Y}")
        k("s_mov_b32 s63, 0")
        k("s_mov_b64 exec, 1")
        k("global_atomic_add v9, v10, v11, s[8:9] sc0")
        k("s_mov_b64 exec, -1")
        issue_k(Y, "s7")
        issue_v(Y, "s7")
        k.label(f"L_entry{nm}")
        for j in range(8):
            k(f"v_mfma_f32_16x16x32_bf16 v[{32 + 4 * j}:{35 + 4 * j}], a[{32 * X + 4 * j}:{32 * X + 4 * j + 3}], v[12:15], 0")
        for rnd in range(3):
            for j in range(8):
                b = j & 3
                ps = [p for p in range(4) if p != b]
                p = ps[rnd]
                n = 4 * ((b - p) % 4)
                D = 32 + 4 * j
                if rnd < 2:
                    k(f"v_add_f32_dpp v{D + b}, v{D + p}, v{D + b} row_ror:{n} row_mask:0xf bank_mask:0xf")
                else:
                    k(f"v_add_f32_dpp v{20 + (j >> 2)}, v{D + p}, v{D + b} row_ror:{n} row_mask:0xf bank_mask:0x{1 << b:x}")
        k("v_fma_f32 v22, v20, s56, -v7")
        k("v_fma_f32 v23, v21, s56, -v7")
        k("v_max_f32 v24, v22, v23")
        k("v_cmp_lt_f32 vcc, s57, v24")
        k(f"s_cbranch_vccz L_norare{nm}")
        k("s_call_b64 s[10:11], L_rare")
        k.label(f"L_norare{nm}")
        k("v_exp_f32 v22, v22")
        k("v_exp_f32 v23, v23")
        k("s_nop 0")
        k("v_cvt_pk_bf16_f32 v24, v22, v22")
        k("v_cvt_pk_bf16_f32 v25, v23, v23")
        k("v_add_f32 v8, v8, v22")
        k("v_and_b32 v16, v24, v5")
        k("v_and_b32 v17, v24, v6")
        k("v_and_b32 v18, v25, v5")
        k("v_and_b32 v19, v25, v6")
        k("v_add_f32 v8, v8, v23")
        k("s_waitcnt vmcnt(17)")
        src = 64 + 32 * X
        sets = [32, 36, 40]
        perm_frag(sets[0], src, 0)
        perm_frag(sets[1], src, 1)
        for i in range(8):
            if i + 2 < 8:
                perm_frag(sets[(i + 2) % 3], src, i + 2)
            b = sets[i % 3]
            k(f"v_mfma_f32_16x16x32_bf16 a[{64 + 4 * i}:{67 + 4 * i}], v[16:19], v[{b}:{b + 3}], a[{64 + 4 * i}:{67 + 4 * i}]")

    step(0)
    step(1)
    k("s_branch L_stepA")

    k.label("L_rare")
    k("s_nop 4")
    k("v_mul_f32 v22, s56, v20")
    k("v_mul_f32 v23, s56, v21")
    k("v_max_f32 v24, v22, v23")
    allreduce("v24", "v25", "v_max_f32", steps=("r4", "r8", "x16", "x32"))
    k("v_max_f32 v24, v24, v7")
    k("v_sub_f32 v25, v7, v24")
    k("v_exp_f32 v25, v25")
    k("v_mov_b32 v7, v24")
    k("v_sub_f32 v22, v22, v24")
    k("v_sub_f32 v23, v23, v24")
    k("v_mul_f32 v8, v8, v25")
    for r in range(4):
        k(f"v_readlane_b32 s{66 + r}, v25, {r}")
    for i in range(8):
        for r in range(4):
            k(f"v_accvgpr_read_b32 v{32 + 4 * i + r}, a{64 + 4 * i + r}")
    for i in range(8):
        for r in range(4):
            k(f"v_mul_f32 v{32 + 4 * i + r}, s{66 + r}, v{32 + 4 * i + r}")
    for i in range(8):
        for r in range(4):
            k(f"v_accvgpr_write_b32 a{64 + 4 * i + r}, v{32 + 4 * i + r}")
    k("s_nop 1")
    k("s_setpc_b64 s[10:11]")

    k.label("L_loopdone")
    k("s_nop 7")
    stamp(3)
    k("s_waitcnt vmcnt(0)")
    for i in range(32):
        k(f"v_accvgpr_read_b32 v{64 + i}, a{64 + i}")
    for i in range(8):
        b = 64 + 4 * i
        k(f"v_permlane32_swap_b32 v{b}, v{b + 2}")
        k(f"v_permlane32_swap_b32 v{b + 1}, v{b + 3}")
    for i in range(8):
        b = 64 + 4 * i
        k(f"v_add_f32 v{b}, v{b}, v{b + 2}")
        k(f"v_add_f32 v{b + 1}, v{b + 1}, v{b + 3}")
    for i in range(8):
        b = 64 + 4 * i
        k(f"v_permlane16_swap_b32 v{b}, v{b + 1}")
    for i in range(8):
        b = 64 + 4 * i
        k(f"v_add_f32 v{96 + i}, v{b}, v{b + 1}")
    allreduce("v8", "v24", "v_add_f32", steps=("r4", "r8", "x16", "x32"))
    k("v_lshlrev_b32 v32, 5, v0")
    k("s_lshl_b32 s7, s3, 11")
    k("v_add_u32 v32, s7, v32")
    k(f"ds_write_b128 v32, v[96:99] offset:{L_RED}")
    k(f"ds_write_b128 v32, v[100:103] offset:{L_RED + 16}")
    k("v_lshlrev_b32 v33, 5, v0")
    k("s_lshl_b32 s7, s3, 2")
    k("v_add_u32 v33, s7, v33")
    k("s_mov_b64 exec, 0xf")
    k(f"ds_write_b32 v33, v7 offset:{L_MM}")
    k(f"ds_write_b32 v33, v8 offset:{L_LL}")
    k("s_mov_b64 exec, -1")
    k("s_waitcnt lgkmcnt(0)")
    k("s_barrier")
    k("s_lshr_b32 s66, s3, 1")
    k("s_lshl_b32 s7, s66, 5")
    k("v_mov_b32 v33, s7")
    k(f"ds_read_b128 v[36:39], v33 offset:{L_MM}")
    k(f"ds_read_b128 v[40:43], v33 offset:{L_MM + 16}")
    k(f"ds_read_b128 v[44:47], v33 offset:{L_LL}")
    k(f"ds_read_b128 v[48:51], v33 offset:{L_LL + 16}")
    k("s_lshl_b32 s7, s3, 8")
    k("v_lshl_add_u32 v34, v0, 2, s7")
    for w in range(8):
        k(f"ds_read_b32 v{52 + w}, v34 offset:{L_RED + w * 2048}")
    k("s_waitcnt lgkmcnt(12)")
    k("v_max3_f32 v60, v36, v37, v38")
    k("s_waitcnt lgkmcnt(8)")
    k("v_max3_f32 v60, v60, v39, v40")
    k("v_max3_f32 v60, v60, v41, v42")
    k("v_max_f32 v60, v60, v43")
    for w in range(8):
        k(f"v_sub_f32 v{36 + w}, v{36 + w}, v60")
    for w in range(8):
        k(f"v_exp_f32 v{36 + w}, v{36 + w}")
    k("s_waitcnt lgkmcnt(0)")
    k("v_mul_f32 v64, v36, v52")
    k("v_mul_f32 v62, v36, v44")
    for w in range(1, 8):
        k(f"v_fmac_f32 v64, v{36 + w}, v{52 + w}")
        k(f"v_fmac_f32 v62, v{36 + w}, v{44 + w}")
    k("v_mov_b32 v65, s6")
    k("v_mov_b32 v61, s6")
    k("v_mov_b32 v63, s6")
    k("s_lshl_b32 s7, s2, 12")
    k(f"s_add_u32 s7, s7, {WS_O1}")
    k("v_lshl_add_u32 v34, v34, 1, s7")
    k("global_store_dwordx2 v34, v[64:65], s[8:9] sc1")
    k("s_and_b32 s7, s3, 1")
    k("s_cmp_lg_u32 s7, 0")
    k("s_cbranch_scc1 L_pubdone")
    k("s_lshl_b32 s7, s4, 2")
    k("s_add_u32 s7, s7, s66")
    k("s_lshl_b32 s7, s7, 5")
    k("s_add_u32 s7, s7, s5")
    k("s_lshl_b32 s7, s7, 4")
    k(f"s_add_u32 s7, s7, {WS_ML}")
    k("v_mov_b32 v34, s7")
    k("s_mov_b64 exec, 1")
    k("global_store_dwordx4 v34, v[60:63], s[8:9] sc1")
    k("s_mov_b64 exec, -1")
    k.label("L_pubdone")
    stamp(4)
    k("s_cmp_eq_u32 s80, 3")
    k("s_cbranch_scc1 L_T2")
    k("s_cmp_eq_u32 s80, 4")
    k("s_cbranch_scc1 L_MLP")
    k.label("L_end")
    k("s_endpgm")

    k.label("L_T2")
    k("s_lshl_b32 s7, s3, 13")
    k(f"s_add_u32 s7, s7, {L_W}")
    k("v_add_u32 v24, s7, v1")
    for e in range(8):
        k(f"ds_read_b128 v[{64 + 4 * e}:{67 + 4 * e}], v24 offset:{e * 1024}")
    k("s_and_b32 s66, s3, 1")
    k("s_lshr_b32 s67, s3, 1")
    k("s_lshr_b32 s68, s81, 2")
    k("s_and_b32 s69, s68, 1")
    k("s_lshl_b32 s69, s69, 1")
    k("s_add_u32 s69, s69, s66")
    k("s_lshl_b32 s7, s4, 5")
    k("s_lshl_b32 s70, s67, 3")
    k("s_add_u32 s7, s7, s70")
    k("s_lshl_b32 s7, s7, 12")
    k("s_lshl_b32 s71, s69, 10")
    k("s_add_u32 s7, s7, s71")
    k(f"s_add_u32 s7, s7, {WS_O1}")
    k("v_add_u32 v24, s7, v1")
    k("v_add_u32 v25, 0x2000, v24")
    k("v_add_u32 v26, 0x4000, v24")
    k("v_add_u32 v27, 0x6000, v24")
    k("s_lshl_b32 s7, s4, 2")
    k("s_add_u32 s7, s7, s69")
    k("s_lshl_b32 s7, s7, 9")
    k(f"s_add_u32 s7, s7, {WS_ML}")
    k("v_and_b32 v22, 31, v0")
    k("v_lshl_add_u32 v22, v22, 4, s7")
    k("s_waitcnt lgkmcnt(0)")
    for i in range(8):
        perm_frag(32 + 4 * i, 64, i)
    k("s_barrier")
    top = poll_begin()
    k("global_load_dwordx4 v[96:99], v22, s[8:9] sc1")
    for kk in range(8):
        a = ["v24", "v25", "v26", "v27"][kk >> 1]
        if kk & 1:
            k(f"v_add_u32 v23, 0x1000, {a}")
            k(f"global_load_dwordx4 v[{64 + 4 * kk}:{67 + 4 * kk}], v23, s[8:9] sc1")
        else:
            k(f"global_load_dwordx4 v[{64 + 4 * kk}:{67 + 4 * kk}], {a}, s[8:9] sc1")
    k("s_waitcnt vmcnt(0)")
    check_tags([f"v{65 + 2 * i}" for i in range(16)] + ["v97", "v99"], "v100", "v101", top)
    stamp(5)
    k("v_mov_b32 v100, v96")
    allreduce("v100", "v101", "v_max_f32", steps=("r1", "r2", "r4", "r8", "x16"))
    k("v_sub_f32 v100, v96, v100")
    k("v_exp_f32 v100, v100")
    k("v_mul_f32 v102, v100, v98")
    allreduce("v102", "v101", "v_add_f32", steps=("r1", "r2", "r4", "r8", "x16"))
    k("v_rcp_f32 v102, v102")
    k("v_mul_f32 v100, v100, v102")
    for kk in range(8):
        k(f"s_add_u32 s7, s70, {kk}")
        k(f"v_readlane_b32 s{72 + kk}, v100, s7")
    k("v_mul_f32 v104, s72, v64")
    k("v_mul_f32 v105, s72, v66")
    for kk in range(1, 8):
        k(f"v_fmac_f32 v104, s{72 + kk}, v{64 + 4 * kk}")
        k(f"v_fmac_f32 v105, s{72 + kk}, v{66 + 4 * kk}")
    k("s_lshl_b32 s7, s67, 10")
    k("s_lshl_b32 s71, s66, 9")
    k("s_add_u32 s7, s7, s71")
    k("v_lshl_add_u32 v23, v0, 3, s7")
    k(f"ds_write_b64 v23, v[104:105] offset:{L_RED}")
    k("s_lshl_b32 s7, s3, 7")
    k("v_lshl_add_u32 v23, v28, 5, s7")
    k("s_waitcnt lgkmcnt(0)")
    k("s_barrier")
    for cg in range(4):
        k(f"ds_read_b128 v[{64 + 8 * cg}:{67 + 8 * cg}], v23 offset:{L_RED + cg * 1024}")
        k(f"ds_read_b128 v[{68 + 8 * cg}:{71 + 8 * cg}], v23 offset:{L_RED + cg * 1024 + 16}")
    k("s_waitcnt lgkmcnt(0)")
    for i in range(8):
        k(f"v_add_f32 v{64 + i}, v{64 + i}, v{72 + i}")
        k(f"v_add_f32 v{80 + i}, v{80 + i}, v{88 + i}")
    for i in range(8):
        k(f"v_add_f32 v{64 + i}, v{64 + i}, v{80 + i}")
    pack8(64, 16)
    for i in range(8):
        k(f"v_mfma_f32_16x16x32_bf16 v[{64 + 4 * i}:{67 + 4 * i}], v[16:19], v[{32 + 4 * i}:{35 + 4 * i}], 0")
    k("s_lshl_b32 s7, s3, 9")
    k("v_lshl_add_u32 v23, v0, 5, s7")
    k(f"v_add_u32 v23, {L_RED2}, v23")
    k("s_mov_b64 exec, 0xffff")
    for i in range(0, 8, 2):
        k(f"ds_write2_b32 v23, v{64 + 4 * i}, v{68 + 4 * i} offset0:{i} offset1:{i + 1}")
    k("s_mov_b64 exec, -1")
    k("s_waitcnt lgkmcnt(0)")
    k("s_barrier")
    k("s_cmp_ge_u32 s3, 2")
    k("s_cbranch_scc1 L_end")
    k("s_lshl_b32 s7, s3, 8")
    k("v_lshl_add_u32 v23, v0, 2, s7")
    for w in range(8):
        k(f"ds_read_b32 v{64 + w}, v23 offset:{L_RED2 + w * 512}")
    k("s_lshl_b32 s7, s81, 10")
    k(f"s_add_u32 s7, s7, {WS_E2}")
    k("v_lshl_add_u32 v23, v23, 1, s7")
    k("v_mov_b32 v73, s6")
    k("s_waitcnt lgkmcnt(0)")
    k("v_add_f32 v64, v64, v65")
    k("v_add_f32 v66, v66, v67")
    k("v_add_f32 v68, v68, v69")
    k("v_add_f32 v70, v70, v71")
    k("v_add_f32 v64, v64, v66")
    k("v_add_f32 v68, v68, v70")
    k("v_add_f32 v72, v64, v68")
    k("global_store_dwordx2 v23, v[72:73], s[8:9] sc1")
    stamp(6)
    k("s_endpgm")

    H2 = L_RED + 4096
    T3R = L_RED + 12288
    H1 = L_RED + 14336
    k.label("L_MLP")
    k("s_lshl_b32 s7, s3, 13")
    k(f"s_add_u32 s7, s7, {L_W}")
    k("v_add_u32 v24, s7, v1")
    for e in range(8):
        k(f"ds_read_b128 v[{64 + 4 * e}:{67 + 4 * e}], v24 offset:{e * 1024}")
    k("v_add_u32 v24, 0x10000, v24")
    for e in range(8):
        k(f"ds_read_b128 v[{96 + 4 * e}:{99 + 4 * e}], v24 offset:{e * 1024}")
    k("s_waitcnt lgkmcnt(8)")
    for i in range(8):
        perm_frag(32 + 4 * i, 64, i)
    k("s_waitcnt lgkmcnt(0)")
    for i in range(8):
        perm_frag(64 + 4 * i, 96, i)
    for i in range(32):
        k(f"v_accvgpr_write_b32 a{i}, v{64 + i}")
    k("v_lshlrev_b32 v24, 5, v0")
    k(f"v_add_u32 v24, {WS_MOD + 1024 * 4}, v24")
    k("v_add_u32 v25, 0x1000, v24")
    k("s_lshl_b32 s7, s81, 7")
    k(f"s_add_u32 s7, s7, {WS_MOD + 2560 * 4}")
    k("v_lshl_add_u32 v26, v29, 3, s7")
    k("global_load_dwordx4 v[88:91], v1, s[16:17]")
    top = poll_begin()
    k("global_load_dwordx4 v[64:67], v24, s[8:9] sc1")
    k("global_load_dwordx4 v[68:71], v24, s[8:9] offset:16 sc1")
    k("global_load_dwordx4 v[72:75], v24, s[8:9] offset:2048 sc1")
    k("global_load_dwordx4 v[76:79], v24, s[8:9] offset:2064 sc1")
    k("global_load_dwordx4 v[80:83], v25, s[8:9] sc1")
    k("global_load_dwordx4 v[84:87], v25, s[8:9] offset:16 sc1")
    k("v_min_u32 v27, 0x12ff8, v26")
    k("global_load_dwordx2 v[92:93], v27, s[8:9] sc1")
    k("s_waitcnt vmcnt(0)")
    check_tags([f"v{65 + 2 * i}" for i in range(12)] + ["v93"], "v94", "v95", top)
    unpack8(88, 96)
    unpack_gr([64, 66, 68, 70], 104)
    unpack_gr([72, 74, 76, 78], 112)
    unpack_gr([80, 82, 84, 86], 120)
    for i in range(8):
        k(f"v_add_f32 v{120 + i}, 1.0, v{120 + i}")
    k("v_mov_b32 v21, v92")
    k("s_lshr_b32 s66, s3, 2")
    k("s_and_b32 s67, s3, 3")
    k("s_lshl_b32 s7, s66, 15")
    k("s_lshl_b32 s68, s67, 10")
    k("s_add_u32 s7, s7, s68")
    k(f"s_add_u32 s7, s7, {WS_E2}")
    k("v_add_u32 v24, s7, v1")
    k("v_add_u32 v25, 0x2000, v24")
    k("v_add_u32 v26, 0x4000, v24")
    k("v_add_u32 v27, 0x6000, v24")
    k("s_barrier")
    top = poll_begin()
    for kk in range(8):
        a = ["v24", "v25", "v26", "v27"][kk >> 1]
        if kk & 1:
            k(f"v_add_u32 v23, 0x1000, {a}")
            k(f"global_load_dwordx4 v[{64 + 4 * kk}:{67 + 4 * kk}], v23, s[8:9] sc1")
        else:
            k(f"global_load_dwordx4 v[{64 + 4 * kk}:{67 + 4 * kk}], {a}, s[8:9] sc1")
    k("s_waitcnt vmcnt(0)")
    check_tags([f"v{65 + 2 * i}" for i in range(16)], "v22", "v23", top)
    stamp(5)
    for kk in range(1, 8):
        k(f"v_add_f32 v64, v64, v{64 + 4 * kk}")
        k(f"v_add_f32 v66, v66, v{66 + 4 * kk}")
    k("v_mov_b32 v65, v66")
    k("s_lshl_b32 s7, s66, 11")
    k("s_lshl_b32 s68, s67, 9")
    k("s_add_u32 s7, s7, s68")
    k("v_lshl_add_u32 v23, v0, 3, s7")
    k(f"ds_write_b64 v23, v[64:65] offset:{L_RED}")
    k("v_lshlrev_b32 v23, 5, v0")
    k("s_waitcnt lgkmcnt(0)")
    k("s_barrier")
    k(f"ds_read_b128 v[64:67], v23 offset:{L_RED}")
    k(f"ds_read_b128 v[68:71], v23 offset:{L_RED + 16}")
    k(f"ds_read_b128 v[72:75], v23 offset:{L_RED + 2048}")
    k(f"ds_read_b128 v[76:79], v23 offset:{L_RED + 2064}")
    k("s_waitcnt lgkmcnt(0)")
    for i in range(8):
        k(f"v_add_f32 v{64 + i}, v{64 + i}, v{72 + i}")
    for i in range(8):
        k(f"v_fma_f32 v{64 + i}, v{104 + i}, v{64 + i}, v{96 + i}")
    k("s_cmp_lg_u32 s3, 0")
    k("s_cbranch_scc1 L_MLP_nox2")
    k(f"ds_write_b128 v23, v[64:67] offset:{L_X2}")
    k(f"ds_write_b128 v23, v[68:71] offset:{L_X2 + 16}")
    k.label("L_MLP_nox2")
    k("v_add_f32 v80, v64, v65")
    for i in range(2, 8):
        k(f"v_add_f32 v80, v80, v{64 + i}")
    allreduce("v80", "v81", "v_add_f32")
    k(f"v_mul_f32 v80, 0x{f2u(1.0 / 512):08x}, v80")
    for i in range(8):
        k(f"v_sub_f32 v{72 + i}, v{64 + i}, v80")
    k("v_mul_f32 v82, v72, v72")
    for i in range(1, 8):
        k(f"v_fmac_f32 v82, v{72 + i}, v{72 + i}")
    allreduce("v82", "v81", "v_add_f32")
    k(f"v_mov_b32 v83, 0x{f2u(1e-5):08x}")
    k(f"v_fmac_f32 v83, 0x{f2u(1.0 / 512):08x}, v82")
    k("v_rsq_f32 v83, v83")
    for i in range(8):
        k(f"v_mul_f32 v{72 + i}, v{72 + i}, v83")
    for i in range(8):
        k(f"v_fma_f32 v{72 + i}, v{72 + i}, v{120 + i}, v{112 + i}")
    pack8(72, 84)
    k("s_lshl_b32 s7, s3, 10")
    k("v_add_u32 v23, s7, v1")
    k(f"ds_write_b128 v23, v[84:87] offset:{H2}")
    k("v_and_b32 v22, 1, v0")
    k("v_lshlrev_b32 v22, 2, v22")
    k("v_add_u32 v22, v22, v28")
    k("s_mul_i32 s7, s3, 1152")
    k("v_lshl_add_u32 v22, v22, 4, s7")
    k("s_waitcnt lgkmcnt(0)")
    k(f"ds_read_b128 v[16:19], v22 offset:{H2}")
    k("s_waitcnt lgkmcnt(0)")
    for i in range(8):
        k(f"v_mfma_f32_16x16x32_bf16 v[{64 + 4 * i}:{67 + 4 * i}], v[16:19], v[{32 + 4 * i}:{35 + 4 * i}], 0")
    for i in range(8):
        k(f"v_add_f32_dpp v{96 + i}, v{64 + 4 * i + 1}, v{64 + 4 * i} row_ror:8 row_mask:0xf bank_mask:0xf")
    k("s_lshl_b32 s7, s3, 8")
    k("v_lshl_add_u32 v23, v0, 5, s7")
    k("s_mov_b64 exec, 0xff")
    k(f"ds_write_b128 v23, v[96:99] offset:{T3R}")
    k(f"ds_write_b128 v23, v[100:103] offset:{T3R + 16}")
    k("s_mov_b64 exec, -1")
    k("v_lshlrev_b32 v23, 2, v0")
    k("s_waitcnt lgkmcnt(0)")
    k("s_barrier")
    for w in range(8):
        k(f"ds_read_b32 v{64 + w}, v23 offset:{T3R + w * 256}")
    k("s_waitcnt lgkmcnt(0)")
    k("v_add_f32 v64, v64, v65")
    k("v_add_f32 v66, v66, v67")
    k("v_add_f32 v68, v68, v69")
    k("v_add_f32 v70, v70, v71")
    k("v_add_f32 v64, v64, v66")
    k("v_add_f32 v68, v68, v70")
    k("v_add_f32 v64, v64, v68")
    silu_inplace([64], [65])
    k("v_cvt_pk_bf16_f32 v64, v64, v64")
    k("s_lshl_b32 s7, s3, 7")
    k("v_lshl_add_u32 v23, v0, 1, s7")
    k(f"ds_write_b16 v23, v64 offset:{H1}")
    k("v_and_b32 v22, 1, v0")
    k("v_lshlrev_b32 v22, 2, v22")
    k("v_add_u32 v22, v22, v28")
    k("v_lshl_add_u32 v22, v22, 4, s7")
    k("s_waitcnt lgkmcnt(0)")
    k(f"ds_read_b128 v[16:19], v22 offset:{H1}")
    for i in range(8):
        k(f"v_mov_b32 v{97 + 2 * i}, s6")
    k("s_lshl_b32 s7, s81, 12")
    k("s_lshl_b32 s68, s3, 9")
    k("s_add_u32 s7, s7, s68")
    k(f"s_add_u32 s7, s7, {WS_E3}")
    k("v_lshl_add_u32 v23, v0, 6, s7")
    k("s_waitcnt lgkmcnt(0)")
    for i in range(8):
        k(f"v_mfma_f32_16x16x32_bf16 v[{64 + 4 * i}:{67 + 4 * i}], v[16:19], a[{4 * i}:{4 * i + 3}], 0")
    for i in range(8):
        k(f"v_add_f32_dpp v{96 + 2 * i}, v{64 + 4 * i + 1}, v{64 + 4 * i} row_ror:8 row_mask:0xf bank_mask:0xf")
    k("s_mov_b64 exec, 0xff")
    for i in range(4):
        k(f"global_store_dwordx4 v23, v[{96 + 4 * i}:{99 + 4 * i}], s[8:9] offset:{16 * i} sc1")
    k("s_mov_b64 exec, -1")
    stamp(6)
    k("s_cmp_lg_u32 s3, 0")
    k("s_cbranch_scc1 L_end")
    k("s_cmp_ge_u32 s81, 16")
    k("s_cbranch_scc1 L_end")
    k("s_lshl_b32 s7, s81, 7")
    k("v_lshl_add_u32 v22, v29, 3, s7")
    k(f"ds_read_b64 v[112:113], v22 offset:{L_X2}")
    k("v_lshlrev_b32 v24, 1, v22")
    k("v_lshl_add_u32 v24, v28, 12, v24")
    k(f"v_add_u32 v24, {WS_E3}, v24")
    top = poll_begin()
    for kk in range(7):
        k(f"v_add_u32 v23, {kk * 16384}, v24")
        k(f"global_load_dwordx4 v[{64 + 4 * kk}:{67 + 4 * kk}], v23, s[8:9] sc1")
    k("s_waitcnt vmcnt(0)")
    check_tags([f"v{65 + 2 * i}" for i in range(14)], "v100", "v101", top)
    stamp(7)
    for kk in range(1, 7):
        k(f"v_add_f32 v64, v64, v{64 + 4 * kk}")
        k(f"v_add_f32 v66, v66, v{66 + 4 * kk}")
    allreduce("v64", "v65", "v_add_f32", steps=("x16", "x32"))
    allreduce("v66", "v65", "v_add_f32", steps=("x16", "x32"))
    k("v_lshlrev_b32 v68, 16, v21")
    k("v_and_b32 v69, 0xffff0000, v21")
    k("s_waitcnt lgkmcnt(0)")
    k("v_fma_f32 v64, v68, v64, v112")
    k("v_fma_f32 v66, v69, v66, v113")
    k("v_cvt_pk_bf16_f32 v64, v64, v66")
    k("v_lshrrev_b32 v22, 1, v22")
    k("s_mov_b64 exec, 0xffff")
    k("global_store_dword v22, v64, s[36:37]")
    k("s_mov_b64 exec, -1")
    k("s_cmp_lg_u32 s81, 0")
    k("s_cbranch_scc1 L_end2")
    k("v_mov_b32 v22, 0")
    k("v_mov_b32 v23, s6")
    k("s_mov_b64 exec, 1")
    k("global_store_dword v22, v23, s[8:9]")
    k("s_mov_b64 exec, -1")
    k.label("L_end2")
    stamp(8)
    k("s_endpgm")

    k.raw('.section .rodata,"a"')
    k.raw(".p2align 6")
    k.raw(f".amdhsa_kernel {NAME}_kernel")
    k.raw("  .amdhsa_next_free_vgpr 224")
    k.raw("  .amdhsa_next_free_sgpr 96")
    k.raw("  .amdhsa_accum_offset 128")
    k.raw("  .amdhsa_group_segment_fixed_size 0")
    k.raw("  .amdhsa_kernarg_size 104")
    k.raw("  .amdhsa_user_sgpr_count 2")
    k.raw("  .amdhsa_user_sgpr_kernarg_segment_ptr 1")
    k.raw("  .amdhsa_system_sgpr_workgroup_id_x 1")
    k.raw(".end_amdhsa_kernel")
    return k.text()


if __name__ == "__main__":
    out = sys.argv[1] if len(sys.argv) > 1 else f"cdna_kernels/{NAME}.s"
    st = "--stamps" in sys.argv
    open(out, "w").write(gen(stamps=st))
    print("wrote", out)
```

```python
import math
import struct
import sys

sys.path.insert(0, "code")
from asmdsl import K

NAME = "adaLN_cond__gqa_block_cached__dense_activation_silu__decode"


def f2u(x):
    return struct.unpack("<I", struct.pack("<f", x))[0]


WS_EPOCH = 0x0
WS_CNT = 0x1000
WS_MOD = 0x10000
WS_Q = 0x14000
WS_ML = 0x18000
WS_O1 = 0x20000
WS_E2 = 0x120000
WS_E3 = 0x130000
WS_STAMP = 0x200000
WS_LOG = 0x300000

L_SCR = 0
L_QF = L_SCR
L_RED = L_SCR + 1024
L_MM = L_RED + 16384
L_LL = L_MM + 128
L_RED2 = L_MM + 256
L_X2 = L_RED2
L_W = 22528
assert L_RED2 + 4096 <= L_W
LDS_TOTAL = L_W + 131072

TILES = 2048
POLL_LIMIT = 200000
L_FLAG = L_RED2 + 4096
assert L_FLAG + 4 <= L_W

SEL_LO, SEL_HI = "s14", "s15"


def gen(stamps=False, ND=4, PW=4):
    NSTATWG = 16 + ND
    POOL0 = 32 * NSTATWG
    SUBPOOL = (TILES - POOL0) // 4
    k = K()
    uid = [0]

    def lab(p):
        uid[0] += 1
        return f"L_{p}_{uid[0]}"

    def stamp(idx):
        if not stamps:
            return
        k("s_memrealtime s[92:93]")
        k("s_waitcnt lgkmcnt(0)")
        k("v_mov_b32 v30, s92")
        k(f"v_mov_b32 v31, s94")
        k("s_mov_b64 exec, 1")
        k(f"global_store_dword v31, v30, s[8:9] offset:{idx * 4}")
        k("s_mov_b64 exec, -1")

    def allreduce(v, t, op, steps=("r1", "r2", "r4", "r8", "x16", "x32")):
        for s in steps:
            if s[0] == "r":
                k(f"{op}_dpp {v}, {v}, {v} row_ror:{s[1:]} row_mask:0xf bank_mask:0xf")
            else:
                k(f"v_mov_b32 {t}, {v}")
                k(f"v_permlane{s[1:]}_swap_b32 {v}, {t}")
                k(f"{op} {v}, {v}, {t}")

    def check_tags(tags, tmn, tmx, retry):
        def chain(op3, op2, dst):
            rest = list(tags)
            if len(rest) >= 3:
                k(f"{op3} {dst}, {rest[0]}, {rest[1]}, {rest[2]}")
                rest = rest[3:]
            else:
                k(f"{op2} {dst}, {rest[0]}, {rest[1]}")
                rest = rest[2:]
            while len(rest) >= 2:
                k(f"{op3} {dst}, {dst}, {rest[0]}, {rest[1]}")
                rest = rest[2:]
            if rest:
                k(f"{op2} {dst}, {dst}, {rest[0]}")
        if len(tags) == 1:
            k(f"v_cmp_ne_u32 vcc, s6, {tags[0]}")
            k("s_nop 0")
            k("s_or_b64 s[12:13], vcc, vcc")
        else:
            chain("v_min3_u32", "v_min_u32", tmn)
            chain("v_max3_u32", "v_max_u32", tmx)
            k(f"v_cmp_ne_u32 vcc, s6, {tmn}")
            k(f"v_cmp_ne_u32 s[12:13], s6, {tmx}")
            k("s_or_b64 s[12:13], s[12:13], vcc")
        k(f"s_cbranch_scc1 {retry}")

    def poll_begin():
        top = lab("poll")
        go = lab("go")
        k("s_mov_b32 s7, 0")
        k(f"s_branch {go}")
        k.label(top)
        k("s_add_u32 s7, s7, 1")
        k(f"s_cmp_ge_u32 s7, {POLL_LIMIT}")
        k("s_cbranch_scc1 L_end")
        k.label(go)
        return top

    def perm_frag(dst, src, i):
        sel = SEL_HI if (i & 1) else SEL_LO
        for jp in range(4):
            lo = src + 4 * (2 * jp) + (i >> 1)
            hi = src + 4 * (2 * jp + 1) + (i >> 1)
            k(f"v_perm_b32 v{dst + jp}, v{hi}, v{lo}, {sel}")

    def gemv_tile(src, afrag, dreg, btmp):
        sets = [btmp, btmp + 4, btmp + 8]
        perm_frag(sets[0], src, 0)
        perm_frag(sets[1], src, 1)
        for i in range(8):
            if i + 2 < 8:
                perm_frag(sets[(i + 2) % 3], src, i + 2)
            b = sets[i % 3]
            k(f"v_mfma_f32_16x16x32_bf16 v[{dreg + 4 * i}:{dreg + 4 * i + 3}], v[{afrag}:{afrag + 3}], v[{b}:{b + 3}], 0")

    def unpack8(src, dst):
        for i in range(4):
            k(f"v_lshlrev_b32 v{dst + 2 * i}, 16, v{src + i}")
            k(f"v_and_b32 v{dst + 2 * i + 1}, 0xffff0000, v{src + i}")

    def unpack_gr(srcs, dst):
        for i, s in enumerate(srcs):
            k(f"v_lshlrev_b32 v{dst + 2 * i}, 16, v{s}")
            k(f"v_and_b32 v{dst + 2 * i + 1}, 0xffff0000, v{s}")

    def silu_inplace(regs, tmp):
        for r, t in zip(regs, tmp):
            k(f"v_mul_f32 v{t}, s58, v{r}")
        for r, t in zip(regs, tmp):
            k(f"v_exp_f32 v{t}, v{t}")
        for r, t in zip(regs, tmp):
            k(f"v_add_f32 v{t}, 1.0, v{t}")
        for r, t in zip(regs, tmp):
            k(f"v_rcp_f32 v{t}, v{t}")
        for r, t in zip(regs, tmp):
            k(f"v_mul_f32 v{r}, v{r}, v{t}")

    def pack8(src, dst):
        for i in range(4):
            k(f"v_cvt_pk_bf16_f32 v{dst + i}, v{src + 2 * i}, v{src + 2 * i + 1}")

    k.raw(f"; @launch grid=(256,1,1) block=(512,1,1) lds={LDS_TOTAL}")
    k.raw('.amdgcn_target "amdgcn-amd-amdhsa--gfx950"')
    k.raw(".text")
    k.raw(f".globl {NAME}_kernel")
    k.raw(".p2align 8")
    k.raw(f".type {NAME}_kernel,@function")
    k.label(f"{NAME}_kernel")
    k("s_cmp_ge_u32 s2, 256")
    k("s_cbranch_scc1 L_end")
    k("s_load_dwordx16 s[16:31], s[0:1], 0")
    k("s_load_dwordx8 s[32:39], s[0:1], 64")
    k("s_load_dwordx2 s[8:9], s[0:1], 96")
    k("v_lshrrev_b32 v1, 6, v0")
    k("v_and_b32 v0, 63, v0")
    k("v_readfirstlane_b32 s3, v1")
    k("s_lshr_b32 s4, s2, 5")
    k("s_and_b32 s5, s2, 31")
    k("s_mov_b32 s14, 0x05040100")
    k("s_mov_b32 s15, 0x07060302")
    k(f"s_mov_b32 s56, 0x{f2u((128 ** -0.5) * math.log2(math.e)):08x}")
    k(f"s_mov_b32 s57, 0x{f2u(8.0):08x}")
    k(f"s_mov_b32 s58, 0x{f2u(-math.log2(math.e)):08x}")
    k("v_lshlrev_b32 v1, 4, v0")
    k("v_add_u32 v2, 0x1000, v1")
    k("v_bfe_u32 v3, v0, 2, 2")
    k("v_lshlrev_b32 v3, 8, v3")
    k("v_lshrrev_b32 v28, 4, v0")
    k("v_lshl_add_u32 v3, v28, 6, v3")
    k("v_and_b32 v29, 3, v0")
    k("v_lshl_add_u32 v3, v29, 4, v3")
    k("v_add_u32 v4, 0x1000, v3")
    k("v_and_b32 v29, 15, v0")
    k("v_bfe_u32 v26, v0, 2, 2")
    k("v_mov_b32 v5, 0")
    k("v_mov_b32 v6, 0")
    k("v_mov_b32 v24, 0x0000ffff")
    k("v_mov_b32 v25, 0xffff0000")
    k("v_cmp_eq_u32 vcc, 0, v26")
    k("v_cndmask_b32 v5, v5, v24, vcc")
    k("v_cmp_eq_u32 vcc, 1, v26")
    k("v_cndmask_b32 v5, v5, v25, vcc")
    k("v_cmp_eq_u32 vcc, 2, v26")
    k("v_cndmask_b32 v6, v6, v24, vcc")
    k("v_cmp_eq_u32 vcc, 3, v26")
    k("v_cndmask_b32 v6, v6, v25, vcc")
    k("v_mov_b32 v7, 0xf149f2ca")
    k("v_mov_b32 v8, 0")
    k("v_mov_b32 v9, 0")
    k("v_mov_b32 v10, 0")
    k("v_mov_b32 v11, 1")
    k(f"ds_write_b32 v10, v10 offset:{L_FLAG}")
    for i in range(32):
        k(f"v_accvgpr_write_b32 a{64 + i}, 0")
    k("v_lshrrev_b32 v27, 3, v29")
    k("v_lshlrev_b32 v27, 5, v27")
    k("v_lshl_add_u32 v27, v28, 3, v27")
    k("v_and_b32 v26, 7, v29")
    k("v_lshlrev_b32 v26, 4, v26")
    k("v_and_b32 v25, 1, v29")
    k("v_lshlrev_b32 v25, 5, v25")
    k("v_lshl_add_u32 v25, v28, 3, v25")
    k("s_waitcnt lgkmcnt(0)")
    k("s_load_dword s6, s[8:9], 0")
    k("s_lshl_b32 s7, s4, 24")
    k("s_add_u32 s40, s18, s7")
    k("s_addc_u32 s41, s19, 0")
    k("s_mov_b32 s42, 0x1000000")
    k("s_mov_b32 s43, 0x20000")
    k("s_add_u32 s44, s20, s7")
    k("s_addc_u32 s45, s21, 0")
    k("s_mov_b32 s46, 0x1000000")
    k("s_mov_b32 s47, 0x20000")
    if stamps:
        k("s_lshl_b32 s94, s2, 3")
        k("s_add_u32 s94, s94, s3")
        k("s_lshl_b32 s94, s94, 6")
        k("s_lshl_b32 s95, s94, 3")
        k(f"s_add_u32 s95, s95, {WS_LOG}")
        k(f"s_add_u32 s94, s94, {WS_STAMP}")
    stamp(0)
    k("s_mov_b32 s80, 0")
    k("s_mov_b32 s81, 0")
    k("s_cmp_lt_u32 s5, 6")
    k("s_cbranch_scc1 L_roleA")
    k("s_cmp_lt_u32 s5, 14")
    k("s_cbranch_scc1 L_roleB")
    k("s_cmp_lt_u32 s5, 22")
    k("s_cbranch_scc1 L_roleT2")
    k("s_and_b32 s7, s4, 1")
    k("s_sub_u32 s7, 26, s7")
    k("s_cmp_lt_u32 s5, s7")
    k("s_cbranch_scc1 L_roleMLP")
    k("s_branch L_common0")

    def stage_finish(ws_off):
        for i in range(8):
            k(f"v_add_f32_dpp v{104 + i}, v{32 + 4 * i + 1}, v{32 + 4 * i} row_ror:8 row_mask:0xf bank_mask:0xf")
        k("v_lshlrev_b32 v112, 5, v0")
        k("s_lshl_b32 s7, s3, 8")
        k(f"s_add_u32 s7, s7, {L_RED}")
        k("v_add_u32 v112, s7, v112")
        k("s_mov_b64 exec, 0xff")
        k("ds_write_b128 v112, v[104:107]")
        k("ds_write_b128 v112, v[108:111] offset:16")
        k("s_mov_b64 exec, -1")
        k("s_waitcnt lgkmcnt(0)")
        k("s_barrier")
        k("s_cmp_lg_u32 s3, 0")
        k("s_cbranch_scc1 L_common")
        k("v_lshlrev_b32 v112, 3, v0")
        for w in range(8):
            k(f"ds_read_b64 v[{32 + 2 * w}:{33 + 2 * w}], v112 offset:{L_RED + w * 256}")
        k("s_lshl_b32 s7, s81, 8")
        k(f"s_add_u32 s7, s7, {ws_off}")
        k("v_add_u32 v113, s7, v112")
        k("s_waitcnt lgkmcnt(0)")
        for w in range(1, 8):
            k(f"v_add_f32 v32, v32, v{32 + 2 * w}")
            k(f"v_add_f32 v33, v33, v{33 + 2 * w}")
        k("v_cvt_pk_bf16_f32 v34, v32, v33")
        k("v_mov_b32 v35, s6")
        k("s_waitcnt vmcnt(0)")
        k("s_mov_b64 exec, 0xffffffff")
        k("global_store_dwordx2 v113, v[34:35], s[8:9] sc1")
        k("s_mov_b64 exec, -1")
        stamp(1)
        k("s_branch L_common")

    k.label("L_roleA")
    k("s_mov_b32 s80, 1")
    k("s_mul_i32 s81, s4, 6")
    k("s_add_u32 s81, s81, s5")
    k("s_mov_b32 s48, s34")
    k("s_mov_b32 s49, s35")
    k(f"s_mov_b32 s50, {512 * 6144}")
    k("s_mov_b32 s51, 0x20000")
    k("s_movk_i32 s7, 6144")
    k("v_mul_lo_u32 v112, v27, s7")
    k("v_add_u32 v112, v112, v26")
    k(f"s_mul_i32 s66, s3, {64 * 6144}")
    k("s_lshl_b32 s7, s81, 7")
    k("s_add_u32 s66, s66, s7")
    k("s_lshl_b32 s7, s3, 6")
    k("v_add_u32 v113, s7, v25")
    k("v_lshlrev_b32 v113, 1, v113")
    k("global_load_dwordx4 v[96:99], v113, s[32:33]")
    for e in range(8):
        k(f"buffer_load_dwordx4 v[{64 + 4 * e}:{67 + 4 * e}], v112, s[48:51], s66 offen nt")
        if e < 7:
            k("s_add_u32 s66, s66, 6144")
    k("s_or_b32 s7, s81, s3")
    k("s_cmp_lg_u32 s7, 0")
    k("s_cbranch_scc1 L_A_nozero")
    k("v_lshlrev_b32 v114, 8, v0")
    k(f"v_add_u32 v114, {WS_CNT}, v114")
    k("s_mov_b64 exec, 0xffffffff")
    k("global_store_dword v114, v10, s[8:9] sc1")
    k("s_mov_b64 exec, -1")
    k("s_waitcnt vmcnt(9)")
    k("s_branch L_A_go")
    k.label("L_A_nozero")
    k("s_waitcnt vmcnt(8)")
    k.label("L_A_go")
    unpack8(96, 104)
    silu_inplace(list(range(104, 112)), list(range(112, 120)))
    pack8(104, 16)
    k("s_waitcnt vmcnt(0) lgkmcnt(0)")
    k("s_add_u32 s6, s6, 1")
    gemv_tile(64, 16, 32, 96)
    stage_finish(WS_MOD)

    k.label("L_roleB")
    k("s_mov_b32 s80, 2")
    k("s_lshl_b32 s81, s4, 3")
    k("s_add_u32 s81, s81, s5")
    k("s_sub_u32 s81, s81, 6")
    k("s_mov_b32 s48, s22")
    k("s_mov_b32 s49, s23")
    k(f"s_mov_b32 s50, {512 * 8192}")
    k("s_mov_b32 s51, 0x20000")
    k("v_lshlrev_b32 v112, 13, v27")
    k("v_add_u32 v112, v112, v26")
    k("s_lshl_b32 s66, s3, 19")
    k("s_lshl_b32 s7, s81, 7")
    k("s_add_u32 s66, s66, s7")
    k("s_lshl_b32 s7, s3, 6")
    k("v_add_u32 v113, s7, v25")
    k("v_lshlrev_b32 v114, 1, v113")
    k("global_load_dwordx4 v[96:99], v1, s[16:17]")
    k("global_load_dwordx4 v[100:103], v114, s[16:17]")
    for e in range(8):
        k(f"buffer_load_dwordx4 v[{64 + 4 * e}:{67 + 4 * e}], v112, s[48:51], s66 offen nt")
        if e < 7:
            k("s_add_u32 s66, s66, 8192")
    k("v_lshlrev_b32 v113, 2, v113")
    k(f"v_add_u32 v113, {WS_MOD}, v113")
    k("s_waitcnt vmcnt(8)")
    unpack8(96, 104)
    k("v_add_f32 v120, v104, v105")
    for i in range(2, 8):
        k(f"v_add_f32 v120, v120, v{104 + i}")
    allreduce("v120", "v121", "v_add_f32")
    k(f"v_mul_f32 v120, 0x{f2u(1.0 / 512):08x}, v120")
    for i in range(8):
        k(f"v_sub_f32 v{104 + i}, v{104 + i}, v120")
    k("v_mul_f32 v122, v104, v104")
    for i in range(1, 8):
        k(f"v_fmac_f32 v122, v{104 + i}, v{104 + i}")
    allreduce("v122", "v121", "v_add_f32")
    k(f"v_mov_b32 v123, 0x{f2u(1e-5):08x}")
    k(f"v_fmac_f32 v123, 0x{f2u(1.0 / 512):08x}, v122")
    k("v_rsq_f32 v123, v123")
    unpack8(100, 104)
    for i in range(8):
        k(f"v_sub_f32 v{104 + i}, v{104 + i}, v120")
    for i in range(8):
        k(f"v_mul_f32 v{104 + i}, v{104 + i}, v123")
    k("s_waitcnt lgkmcnt(0)")
    k("s_add_u32 s6, s6, 1")
    k("v_and_b32 v114, 1, v0")
    k("v_lshlrev_b32 v114, 11, v114")
    k("s_lshl_b32 s66, s3, 8")
    k(f"s_add_u32 s66, s66, {WS_MOD}")
    k("v_add_u32 v114, s66, v114")
    top = poll_begin()
    k("s_mov_b64 exec, 3")
    k("global_load_dwordx2 v[32:33], v114, s[8:9] sc1")
    k("s_waitcnt vmcnt(0)")
    k("v_cmp_ne_u32 vcc, s6, v33")
    k("s_mov_b64 exec, -1")
    k(f"s_cbranch_vccnz {top}")
    k("global_load_dwordx4 v[32:35], v113, s[8:9] sc1")
    k("global_load_dwordx4 v[36:39], v113, s[8:9] offset:16 sc1")
    k("global_load_dwordx4 v[40:43], v113, s[8:9] offset:2048 sc1")
    k("global_load_dwordx4 v[44:47], v113, s[8:9] offset:2064 sc1")
    k("s_waitcnt vmcnt(0)")
    check_tags([f"v{33 + 2 * i}" for i in range(8)], "v48", "v49", top)
    unpack_gr([32, 34, 36, 38], 112)
    unpack_gr([40, 42, 44, 46], 120)
    for i in range(8):
        k(f"v_add_f32 v{120 + i}, 1.0, v{120 + i}")
    for i in range(8):
        k(f"v_fma_f32 v{104 + i}, v{104 + i}, v{120 + i}, v{112 + i}")
    pack8(104, 16)
    gemv_tile(64, 16, 32, 96)
    stage_finish(WS_Q)

    k.label("L_roleT2")
    k("s_mov_b32 s80, 3")
    k("s_lshl_b32 s81, s4, 3")
    k("s_add_u32 s81, s81, s5")
    k("s_sub_u32 s81, s81, 14")
    k("s_mov_b32 s48, s24")
    k("s_mov_b32 s49, s25")
    k(f"s_mov_b32 s50, {4096 * 1024}")
    k("s_mov_b32 s51, 0x20000")
    k("v_lshlrev_b32 v112, 13, v28")
    k("v_lshl_add_u32 v112, v29, 4, v112")
    k("s_lshr_b32 s66, s81, 2")
    k("s_lshl_b32 s66, s66, 18")
    k("s_lshl_b32 s7, s3, 15")
    k("s_add_u32 s66, s66, s7")
    k("s_and_b32 s7, s81, 3")
    k("s_lshl_b32 s7, s7, 8")
    k("s_add_u32 s66, s66, s7")
    k("s_lshl_b32 s67, s3, 13")
    k(f"s_add_u32 s67, s67, {L_W}")
    for e in range(8):
        k("s_mov_b32 m0, s67")
        if e >= PW:
            k(f"s_waitcnt vmcnt({PW - 1})")
        k(f"buffer_load_dwordx4 v112, s[48:51], s66 offen nt lds")
        if e < 7:
            k("s_add_u32 s66, s66, 1024")
            k("s_add_u32 s67, s67, 1024")
    k("s_branch L_common0")

    k.label("L_roleMLP")
    k("s_mov_b32 s80, 4")
    k("s_lshr_b32 s81, s4, 1")
    k("s_mul_i32 s81, s81, 7")
    k("s_and_b32 s7, s4, 1")
    k("s_lshl_b32 s7, s7, 2")
    k("s_add_u32 s81, s81, s7")
    k("s_add_u32 s81, s81, s5")
    k("s_sub_u32 s81, s81, 22")
    k("s_mov_b32 s48, s28")
    k("s_mov_b32 s49, s29")
    k(f"s_mov_b32 s50, {512 * 3584}")
    k("s_mov_b32 s51, 0x20000")
    k("s_mov_b32 s52, s30")
    k("s_mov_b32 s53, s31")
    k(f"s_mov_b32 s54, {1792 * 1024}")
    k("s_mov_b32 s55, 0x20000")
    k("s_movk_i32 s7, 3584")
    k("v_mul_lo_u32 v112, v27, s7")
    k("v_add_u32 v112, v112, v26")
    k("v_lshlrev_b32 v113, 10, v27")
    k("v_add_u32 v113, v113, v26")
    k(f"s_mul_i32 s66, s3, {64 * 3584}")
    k("s_lshl_b32 s7, s81, 7")
    k("s_add_u32 s66, s66, s7")
    k("s_lshl_b32 s67, s3, 13")
    k(f"s_add_u32 s67, s67, {L_W}")
    for e in range(8):
        k("s_mov_b32 m0, s67")
        if e >= PW:
            k(f"s_waitcnt vmcnt({PW - 1})")
        k(f"buffer_load_dwordx4 v112, s[48:51], s66 offen nt lds")
        if e < 7:
            k("s_add_u32 s66, s66, 3584")
            k("s_add_u32 s67, s67, 1024")
    k("s_lshl_b32 s66, s81, 16")
    k("s_lshl_b32 s7, s3, 7")
    k("s_add_u32 s66, s66, s7")
    k("s_lshl_b32 s67, s3, 13")
    k(f"s_add_u32 s67, s67, {65536 + L_W}")
    for e in range(8):
        k("s_mov_b32 m0, s67")
        k(f"s_waitcnt vmcnt({PW - 1})")
        k(f"buffer_load_dwordx4 v113, s[52:55], s66 offen nt lds")
        if e < 7:
            k("s_add_u32 s66, s66, 1024")
            k("s_add_u32 s67, s67, 1024")
    k.label("L_common0")
    k("s_waitcnt lgkmcnt(0)")
    k("s_barrier")
    k("s_add_u32 s6, s6, 1")
    k.label("L_common")
    k("s_lshl_b32 s66, s5, 3")
    k("s_add_u32 s66, s66, s3")
    k("s_lshl_b32 s66, s66, 13")
    k("s_add_u32 s67, s66, 0x200000")
    k(f"s_mul_i32 s59, s5, {ND}")
    k("s_add_u32 s59, s59, s3")
    k("s_add_u32 s59, s59, 512")
    k("s_lshl_b32 s59, s59, 13")
    k(f"s_cmp_lt_u32 s3, {ND}")
    k("s_cselect_b32 s64, 1, 0")
    k("s_lshr_b32 s7, s5, 3")
    k("s_add_u32 s7, s7, s3")
    k("s_and_b32 s7, s7, 3")
    k(f"s_add_u32 s62, s7, {POOL0}")
    k("s_lshl_b32 s63, s4, 2")
    k("s_add_u32 s63, s63, s7")
    k("s_lshl_b32 s63, s63, 8")
    k(f"s_add_u32 s63, s63, {WS_CNT}")
    k("v_mov_b32 v10, s63")
    k("s_mov_b32 s63, 1")
    k("s_mov_b32 s60, 1")
    k("s_mov_b32 s61, 1")
    k("s_cmp_eq_u32 s3, 0")
    k("s_cbranch_scc1 L_pollq")

    def issue_k(slot, soff, pace=None):
        for j in range(8):
            vo = "v3" if j < 4 else "v4"
            if pace is not None:
                k(f"s_waitcnt vmcnt({pace - 1})")
            k(f"buffer_load_dwordx4 a[{32 * slot + 4 * j}:{32 * slot + 4 * j + 3}], {vo}, s[40:43], {soff} offen offset:{(j % 4) * 1024} nt")

    def issue_v(slot, soff, pace=None):
        for j in range(8):
            vo = "v1" if j < 4 else "v2"
            b = 64 + 32 * slot + 4 * j
            if pace is not None:
                k(f"s_waitcnt vmcnt({pace - 1})")
            k(f"buffer_load_dwordx4 v[{b}:{b + 3}], {vo}, s[44:47], {soff} offen offset:{(j % 4) * 1024} nt")

    issue_k(0, "s66", PW)
    issue_v(0, "s66", PW)
    issue_k(1, "s67", PW)
    issue_v(1, "s67", PW)
    k("v_mov_b32 v32, 0")
    top = poll_begin()
    k(f"ds_read_b32 v33, v32 offset:{L_FLAG}")
    k("s_waitcnt lgkmcnt(0)")
    k("v_readfirstlane_b32 s65, v33")
    k("s_cmp_eq_u32 s65, 0")
    k(f"s_cbranch_scc1 {top}")
    k(f"ds_read_b128 v[12:15], v1 offset:{L_QF}")
    k("s_waitcnt lgkmcnt(0)")
    k("s_branch L_haveq")

    k.label("L_pollq")
    k("s_setprio 3")
    k("v_and_b32 v32, 3, v0")
    k("v_lshlrev_b32 v32, 9, v32")
    k("v_lshl_add_u32 v32, v28, 7, v32")
    k("v_bfe_u32 v33, v0, 2, 2")
    k("v_lshl_add_u32 v32, v33, 5, v32")
    k("s_lshl_b32 s7, s4, 11")
    k(f"s_add_u32 s7, s7, {WS_Q}")
    k("v_add_u32 v32, s7, v32")
    k("v_lshl_add_u32 v33, v0, 8, s7")
    top = poll_begin()
    k("s_mov_b64 exec, 0xff")
    k("global_load_dwordx2 v[36:37], v33, s[8:9] sc1")
    k("s_waitcnt vmcnt(0)")
    k("v_cmp_ne_u32 vcc, s6, v37")
    k("s_mov_b64 exec, -1")
    k(f"s_cbranch_vccnz {top}")
    k("global_load_dwordx4 v[36:39], v32, s[8:9] sc1")
    k("global_load_dwordx4 v[40:43], v32, s[8:9] offset:16 sc1")
    k("s_waitcnt vmcnt(0)")
    check_tags(["v37", "v39", "v41", "v43"], "v44", "v45", top)
    k("v_mov_b32 v12, v36")
    k("v_mov_b32 v13, v38")
    k("v_mov_b32 v14, v40")
    k("v_mov_b32 v15, v42")
    k(f"ds_write_b128 v1, v[12:15] offset:{L_QF}")
    k("v_mov_b32 v32, 0")
    k("s_waitcnt lgkmcnt(0)")
    k(f"ds_write_b32 v32, v11 offset:{L_FLAG}")
    k("s_setprio 0")
    issue_k(0, "s66")
    issue_v(0, "s66")
    issue_k(1, "s67")
    issue_v(1, "s67")

    k.label("L_haveq")
    stamp(2)
    k("s_waitcnt vmcnt(16)")
    k("s_branch L_entryA")

    def step(X):
        Y = 1 - X
        nm = "AB"[X]
        k.label(f"L_step{nm}")
        k(f"s_cmp_eq_u32 s{60 + X}, 0")
        k("s_cbranch_scc1 L_loopdone")
        k("s_waitcnt vmcnt(8)")
        if stamps:
            k("s_memrealtime s[92:93]")
            k("s_waitcnt lgkmcnt(0)")
            k("v_mov_b32 v30, s92")
            k("v_mov_b32 v31, s95")
            k("s_add_u32 s95, s95, 4")
            k("s_mov_b64 exec, 1")
            k("global_store_dword v31, v30, s[8:9]")
            k("s_mov_b64 exec, -1")
        k("v_readfirstlane_b32 s7, v9")
        k(f"s_cmp_lt_u32 s7, {SUBPOOL}")
        k(f"s_cselect_b32 s{60 + Y}, 1, 0")
        k("s_lshl_b32 s7, s7, 2")
        k("s_add_u32 s7, s7, s62")
        k("s_lshl_b32 s7, s7, 13")
        k("s_cmp_eq_u32 s63, 1")
        k("s_cselect_b32 s7, s59, s7")
        k(f"s_cselect_b32 s{60 + Y}, s64, s{60 + Y}")
        k("s_mov_b32 s63, 0")
        k(f"s_cmp_lg_u32 s{60 + Y}, 0")
        k(f"s_cbranch_scc1 L_refill{nm}")
        k("s_waitcnt vmcnt(0)")
        k(f"s_branch L_entry{nm}")
        k.label(f"L_refill{nm}")
        k("s_mov_b64 exec, 1")
        k("global_atomic_add v9, v10, v11, s[8:9] sc0")
        k("s_mov_b64 exec, -1")
        issue_k(Y, "s7")
        issue_v(Y, "s7")
        k.label(f"L_entry{nm}")
        for j in range(8):
            k(f"v_mfma_f32_16x16x32_bf16 v[{32 + 4 * j}:{35 + 4 * j}], a[{32 * X + 4 * j}:{32 * X + 4 * j + 3}], v[12:15], 0")
        for rnd in range(3):
            for j in range(8):
                b = j & 3
                ps = [p for p in range(4) if p != b]
                p = ps[rnd]
                n = 4 * ((b - p) % 4)
                D = 32 + 4 * j
                if rnd < 2:
                    k(f"v_add_f32_dpp v{D + b}, v{D + p}, v{D + b} row_ror:{n} row_mask:0xf bank_mask:0xf")
                else:
                    k(f"v_add_f32_dpp v{20 + (j >> 2)}, v{D + p}, v{D + b} row_ror:{n} row_mask:0xf bank_mask:0x{1 << b:x}")
        k("v_fma_f32 v22, v20, s56, -v7")
        k("v_fma_f32 v23, v21, s56, -v7")
        k("v_max_f32 v24, v22, v23")
        k("v_cmp_lt_f32 vcc, s57, v24")
        k(f"s_cbranch_vccz L_norare{nm}")
        k("s_call_b64 s[10:11], L_rare")
        k.label(f"L_norare{nm}")
        k("v_exp_f32 v22, v22")
        k("v_exp_f32 v23, v23")
        k("s_nop 0")
        k("v_cvt_pk_bf16_f32 v24, v22, v22")
        k("v_cvt_pk_bf16_f32 v25, v23, v23")
        k("v_add_f32 v8, v8, v22")
        k("v_and_b32 v16, v24, v5")
        k("v_and_b32 v17, v24, v6")
        k("v_and_b32 v18, v25, v5")
        k("v_and_b32 v19, v25, v6")
        k("v_add_f32 v8, v8, v23")
        k("s_waitcnt vmcnt(17)")
        src = 64 + 32 * X
        sets = [32, 36, 40]
        perm_frag(sets[0], src, 0)
        perm_frag(sets[1], src, 1)
        for i in range(8):
            if i + 2 < 8:
                perm_frag(sets[(i + 2) % 3], src, i + 2)
            b = sets[i % 3]
            k(f"v_mfma_f32_16x16x32_bf16 a[{64 + 4 * i}:{67 + 4 * i}], v[16:19], v[{b}:{b + 3}], a[{64 + 4 * i}:{67 + 4 * i}]")

    step(0)
    step(1)
    k("s_branch L_stepA")

    k.label("L_rare")
    k("s_nop 4")
    k("v_mul_f32 v22, s56, v20")
    k("v_mul_f32 v23, s56, v21")
    k("v_max_f32 v24, v22, v23")
    allreduce("v24", "v25", "v_max_f32", steps=("r4", "r8", "x16", "x32"))
    k("v_max_f32 v24, v24, v7")
    k("v_sub_f32 v25, v7, v24")
    k("v_exp_f32 v25, v25")
    k("v_mov_b32 v7, v24")
    k("v_sub_f32 v22, v22, v24")
    k("v_sub_f32 v23, v23, v24")
    k("v_mul_f32 v8, v8, v25")
    for r in range(4):
        k(f"v_readlane_b32 s{66 + r}, v25, {r}")
    for i in range(8):
        for r in range(4):
            k(f"v_accvgpr_read_b32 v{32 + 4 * i + r}, a{64 + 4 * i + r}")
    for i in range(8):
        for r in range(4):
            k(f"v_mul_f32 v{32 + 4 * i + r}, s{66 + r}, v{32 + 4 * i + r}")
    for i in range(8):
        for r in range(4):
            k(f"v_accvgpr_write_b32 a{64 + 4 * i + r}, v{32 + 4 * i + r}")
    k("s_nop 1")
    k("s_setpc_b64 s[10:11]")

    k.label("L_loopdone")
    k("s_nop 7")
    stamp(3)
    k("s_waitcnt vmcnt(0)")
    for i in range(32):
        k(f"v_accvgpr_read_b32 v{64 + i}, a{64 + i}")
    for i in range(8):
        b = 64 + 4 * i
        k(f"v_permlane32_swap_b32 v{b}, v{b + 2}")
        k(f"v_permlane32_swap_b32 v{b + 1}, v{b + 3}")
    for i in range(8):
        b = 64 + 4 * i
        k(f"v_add_f32 v{b}, v{b}, v{b + 2}")
        k(f"v_add_f32 v{b + 1}, v{b + 1}, v{b + 3}")
    for i in range(8):
        b = 64 + 4 * i
        k(f"v_permlane16_swap_b32 v{b}, v{b + 1}")
    for i in range(8):
        b = 64 + 4 * i
        k(f"v_add_f32 v{96 + i}, v{b}, v{b + 1}")
    allreduce("v8", "v24", "v_add_f32", steps=("r4", "r8", "x16", "x32"))
    k("v_lshlrev_b32 v32, 5, v0")
    k("s_lshl_b32 s7, s3, 11")
    k("v_add_u32 v32, s7, v32")
    k(f"ds_write_b128 v32, v[96:99] offset:{L_RED}")
    k(f"ds_write_b128 v32, v[100:103] offset:{L_RED + 16}")
    k("v_lshlrev_b32 v33, 5, v0")
    k("s_lshl_b32 s7, s3, 2")
    k("v_add_u32 v33, s7, v33")
    k("s_mov_b64 exec, 0xf")
    k(f"ds_write_b32 v33, v7 offset:{L_MM}")
    k(f"ds_write_b32 v33, v8 offset:{L_LL}")
    k("s_mov_b64 exec, -1")
    k("s_waitcnt lgkmcnt(0)")
    k("s_barrier")
    k("s_lshr_b32 s66, s3, 1")
    k("s_lshl_b32 s7, s66, 5")
    k("v_mov_b32 v33, s7")
    k(f"ds_read_b128 v[36:39], v33 offset:{L_MM}")
    k(f"ds_read_b128 v[40:43], v33 offset:{L_MM + 16}")
    k(f"ds_read_b128 v[44:47], v33 offset:{L_LL}")
    k(f"ds_read_b128 v[48:51], v33 offset:{L_LL + 16}")
    k("s_lshl_b32 s7, s3, 8")
    k("v_lshl_add_u32 v34, v0, 2, s7")
    for w in range(8):
        k(f"ds_read_b32 v{52 + w}, v34 offset:{L_RED + w * 2048}")
    k("s_waitcnt lgkmcnt(12)")
    k("v_max3_f32 v60, v36, v37, v38")
    k("s_waitcnt lgkmcnt(8)")
    k("v_max3_f32 v60, v60, v39, v40")
    k("v_max3_f32 v60, v60, v41, v42")
    k("v_max_f32 v60, v60, v43")
    for w in range(8):
        k(f"v_sub_f32 v{36 + w}, v{36 + w}, v60")
    for w in range(8):
        k(f"v_exp_f32 v{36 + w}, v{36 + w}")
    k("s_waitcnt lgkmcnt(0)")
    k("v_mul_f32 v64, v36, v52")
    k("v_mul_f32 v62, v36, v44")
    for w in range(1, 8):
        k(f"v_fmac_f32 v64, v{36 + w}, v{52 + w}")
        k(f"v_fmac_f32 v62, v{36 + w}, v{44 + w}")
    k("v_mov_b32 v65, s6")
    k("v_mov_b32 v61, s6")
    k("v_mov_b32 v63, s6")
    k("s_lshl_b32 s7, s2, 12")
    k(f"s_add_u32 s7, s7, {WS_O1}")
    k("v_lshl_add_u32 v34, v34, 1, s7")
    k("global_store_dwordx2 v34, v[64:65], s[8:9] sc1")
    k("s_and_b32 s7, s3, 1")
    k("s_cmp_lg_u32 s7, 0")
    k("s_cbranch_scc1 L_pubdone")
    k("s_lshl_b32 s7, s4, 2")
    k("s_add_u32 s7, s7, s66")
    k("s_lshl_b32 s7, s7, 5")
    k("s_add_u32 s7, s7, s5")
    k("s_lshl_b32 s7, s7, 4")
    k(f"s_add_u32 s7, s7, {WS_ML}")
    k("v_mov_b32 v34, s7")
    k("s_mov_b64 exec, 1")
    k("global_store_dwordx4 v34, v[60:63], s[8:9] sc1")
    k("s_mov_b64 exec, -1")
    k.label("L_pubdone")
    stamp(4)
    k("s_cmp_eq_u32 s80, 3")
    k("s_cbranch_scc1 L_T2")
    k("s_cmp_eq_u32 s80, 4")
    k("s_cbranch_scc1 L_MLP")
    k.label("L_end")
    k("s_endpgm")

    k.label("L_T2")
    k("s_lshl_b32 s7, s3, 13")
    k(f"s_add_u32 s7, s7, {L_W}")
    k("v_add_u32 v24, s7, v1")
    for e in range(8):
        k(f"ds_read_b128 v[{64 + 4 * e}:{67 + 4 * e}], v24 offset:{e * 1024}")
    k("s_and_b32 s66, s3, 1")
    k("s_lshr_b32 s67, s3, 1")
    k("s_lshr_b32 s68, s81, 2")
    k("s_and_b32 s69, s68, 1")
    k("s_lshl_b32 s69, s69, 1")
    k("s_add_u32 s69, s69, s66")
    k("s_lshl_b32 s7, s4, 5")
    k("s_lshl_b32 s70, s67, 3")
    k("s_add_u32 s7, s7, s70")
    k("s_lshl_b32 s7, s7, 12")
    k("s_lshl_b32 s71, s69, 10")
    k("s_add_u32 s7, s7, s71")
    k(f"s_add_u32 s7, s7, {WS_O1}")
    k("v_add_u32 v24, s7, v1")
    k("v_add_u32 v25, 0x2000, v24")
    k("v_add_u32 v26, 0x4000, v24")
    k("v_add_u32 v27, 0x6000, v24")
    k("s_lshl_b32 s7, s4, 2")
    k("s_add_u32 s7, s7, s69")
    k("s_lshl_b32 s7, s7, 9")
    k(f"s_add_u32 s7, s7, {WS_ML}")
    k("v_and_b32 v22, 31, v0")
    k("v_lshl_add_u32 v22, v22, 4, s7")
    k("s_waitcnt lgkmcnt(0)")
    for i in range(8):
        perm_frag(32 + 4 * i, 64, i)
    k("s_barrier")
    top = poll_begin()
    k("global_load_dwordx4 v[96:99], v22, s[8:9] sc1")
    for kk in range(8):
        a = ["v24", "v25", "v26", "v27"][kk >> 1]
        if kk & 1:
            k(f"v_add_u32 v23, 0x1000, {a}")
            k(f"global_load_dwordx4 v[{64 + 4 * kk}:{67 + 4 * kk}], v23, s[8:9] sc1")
        else:
            k(f"global_load_dwordx4 v[{64 + 4 * kk}:{67 + 4 * kk}], {a}, s[8:9] sc1")
    k("s_waitcnt vmcnt(0)")
    check_tags([f"v{65 + 2 * i}" for i in range(16)] + ["v97", "v99"], "v100", "v101", top)
    stamp(5)
    k("v_mov_b32 v100, v96")
    allreduce("v100", "v101", "v_max_f32", steps=("r1", "r2", "r4", "r8", "x16"))
    k("v_sub_f32 v100, v96, v100")
    k("v_exp_f32 v100, v100")
    k("v_mul_f32 v102, v100, v98")
    allreduce("v102", "v101", "v_add_f32", steps=("r1", "r2", "r4", "r8", "x16"))
    k("v_rcp_f32 v102, v102")
    k("v_mul_f32 v100, v100, v102")
    for kk in range(8):
        k(f"s_add_u32 s7, s70, {kk}")
        k(f"v_readlane_b32 s{72 + kk}, v100, s7")
    k("v_mul_f32 v104, s72, v64")
    k("v_mul_f32 v105, s72, v66")
    for kk in range(1, 8):
        k(f"v_fmac_f32 v104, s{72 + kk}, v{64 + 4 * kk}")
        k(f"v_fmac_f32 v105, s{72 + kk}, v{66 + 4 * kk}")
    k("s_lshl_b32 s7, s67, 10")
    k("s_lshl_b32 s71, s66, 9")
    k("s_add_u32 s7, s7, s71")
    k("v_lshl_add_u32 v23, v0, 3, s7")
    k(f"ds_write_b64 v23, v[104:105] offset:{L_RED}")
    k("s_lshl_b32 s7, s3, 7")
    k("v_lshl_add_u32 v23, v28, 5, s7")
    k("s_waitcnt lgkmcnt(0)")
    k("s_barrier")
    for cg in range(4):
        k(f"ds_read_b128 v[{64 + 8 * cg}:{67 + 8 * cg}], v23 offset:{L_RED + cg * 1024}")
        k(f"ds_read_b128 v[{68 + 8 * cg}:{71 + 8 * cg}], v23 offset:{L_RED + cg * 1024 + 16}")
    k("s_waitcnt lgkmcnt(0)")
    for i in range(8):
        k(f"v_add_f32 v{64 + i}, v{64 + i}, v{72 + i}")
        k(f"v_add_f32 v{80 + i}, v{80 + i}, v{88 + i}")
    for i in range(8):
        k(f"v_add_f32 v{64 + i}, v{64 + i}, v{80 + i}")
    pack8(64, 16)
    for i in range(8):
        k(f"v_mfma_f32_16x16x32_bf16 v[{64 + 4 * i}:{67 + 4 * i}], v[16:19], v[{32 + 4 * i}:{35 + 4 * i}], 0")
    k("s_lshl_b32 s7, s3, 9")
    k("v_lshl_add_u32 v23, v0, 5, s7")
    k(f"v_add_u32 v23, {L_RED2}, v23")
    k("s_mov_b64 exec, 0xffff")
    for i in range(0, 8, 2):
        k(f"ds_write2_b32 v23, v{64 + 4 * i}, v{68 + 4 * i} offset0:{i} offset1:{i + 1}")
    k("s_mov_b64 exec, -1")
    k("s_waitcnt lgkmcnt(0)")
    k("s_barrier")
    k("s_cmp_ge_u32 s3, 2")
    k("s_cbranch_scc1 L_end")
    k("s_lshl_b32 s7, s3, 8")
    k("v_lshl_add_u32 v23, v0, 2, s7")
    for w in range(8):
        k(f"ds_read_b32 v{64 + w}, v23 offset:{L_RED2 + w * 512}")
    k("s_lshl_b32 s7, s81, 10")
    k(f"s_add_u32 s7, s7, {WS_E2}")
    k("v_lshl_add_u32 v23, v23, 1, s7")
    k("v_mov_b32 v73, s6")
    k("s_waitcnt lgkmcnt(0)")
    k("v_add_f32 v64, v64, v65")
    k("v_add_f32 v66, v66, v67")
    k("v_add_f32 v68, v68, v69")
    k("v_add_f32 v70, v70, v71")
    k("v_add_f32 v64, v64, v66")
    k("v_add_f32 v68, v68, v70")
    k("v_add_f32 v72, v64, v68")
    k("global_store_dwordx2 v23, v[72:73], s[8:9] sc1")
    stamp(6)
    k("s_endpgm")

    H2 = L_RED + 4096
    T3R = L_RED + 12288
    H1 = L_RED + 14336
    k.label("L_MLP")
    k("s_lshl_b32 s7, s3, 13")
    k(f"s_add_u32 s7, s7, {L_W}")
    k("v_add_u32 v24, s7, v1")
    for e in range(8):
        k(f"ds_read_b128 v[{64 + 4 * e}:{67 + 4 * e}], v24 offset:{e * 1024}")
    k("v_add_u32 v24, 0x10000, v24")
    for e in range(8):
        k(f"ds_read_b128 v[{96 + 4 * e}:{99 + 4 * e}], v24 offset:{e * 1024}")
    k("s_waitcnt lgkmcnt(8)")
    for i in range(8):
        perm_frag(32 + 4 * i, 64, i)
    k("s_waitcnt lgkmcnt(0)")
    for i in range(8):
        perm_frag(64 + 4 * i, 96, i)
    for i in range(32):
        k(f"v_accvgpr_write_b32 a{i}, v{64 + i}")
    k("v_lshlrev_b32 v24, 5, v0")
    k(f"v_add_u32 v24, {WS_MOD + 1024 * 4}, v24")
    k("v_add_u32 v25, 0x1000, v24")
    k("s_lshl_b32 s7, s81, 7")
    k(f"s_add_u32 s7, s7, {WS_MOD + 2560 * 4}")
    k("v_lshl_add_u32 v26, v29, 3, s7")
    k("global_load_dwordx4 v[88:91], v1, s[16:17]")
    top = poll_begin()
    k("global_load_dwordx4 v[64:67], v24, s[8:9] sc1")
    k("global_load_dwordx4 v[68:71], v24, s[8:9] offset:16 sc1")
    k("global_load_dwordx4 v[72:75], v24, s[8:9] offset:2048 sc1")
    k("global_load_dwordx4 v[76:79], v24, s[8:9] offset:2064 sc1")
    k("global_load_dwordx4 v[80:83], v25, s[8:9] sc1")
    k("global_load_dwordx4 v[84:87], v25, s[8:9] offset:16 sc1")
    k("v_min_u32 v27, 0x12ff8, v26")
    k("global_load_dwordx2 v[92:93], v27, s[8:9] sc1")
    k("s_waitcnt vmcnt(0)")
    check_tags([f"v{65 + 2 * i}" for i in range(12)] + ["v93"], "v94", "v95", top)
    unpack8(88, 96)
    unpack_gr([64, 66, 68, 70], 104)
    unpack_gr([72, 74, 76, 78], 112)
    unpack_gr([80, 82, 84, 86], 120)
    for i in range(8):
        k(f"v_add_f32 v{120 + i}, 1.0, v{120 + i}")
    k("v_mov_b32 v21, v92")
    k("s_lshr_b32 s66, s3, 2")
    k("s_and_b32 s67, s3, 3")
    k("s_lshl_b32 s7, s66, 15")
    k("s_lshl_b32 s68, s67, 10")
    k("s_add_u32 s7, s7, s68")
    k(f"s_add_u32 s7, s7, {WS_E2}")
    k("v_add_u32 v24, s7, v1")
    k("v_add_u32 v25, 0x2000, v24")
    k("v_add_u32 v26, 0x4000, v24")
    k("v_add_u32 v27, 0x6000, v24")
    k("s_barrier")
    top = poll_begin()
    for kk in range(8):
        a = ["v24", "v25", "v26", "v27"][kk >> 1]
        if kk & 1:
            k(f"v_add_u32 v23, 0x1000, {a}")
            k(f"global_load_dwordx4 v[{64 + 4 * kk}:{67 + 4 * kk}], v23, s[8:9] sc1")
        else:
            k(f"global_load_dwordx4 v[{64 + 4 * kk}:{67 + 4 * kk}], {a}, s[8:9] sc1")
    k("s_waitcnt vmcnt(0)")
    check_tags([f"v{65 + 2 * i}" for i in range(16)], "v22", "v23", top)
    stamp(5)
    for kk in range(1, 8):
        k(f"v_add_f32 v64, v64, v{64 + 4 * kk}")
        k(f"v_add_f32 v66, v66, v{66 + 4 * kk}")
    k("v_mov_b32 v65, v66")
    k("s_lshl_b32 s7, s66, 11")
    k("s_lshl_b32 s68, s67, 9")
    k("s_add_u32 s7, s7, s68")
    k("v_lshl_add_u32 v23, v0, 3, s7")
    k(f"ds_write_b64 v23, v[64:65] offset:{L_RED}")
    k("v_lshlrev_b32 v23, 5, v0")
    k("s_waitcnt lgkmcnt(0)")
    k("s_barrier")
    k(f"ds_read_b128 v[64:67], v23 offset:{L_RED}")
    k(f"ds_read_b128 v[68:71], v23 offset:{L_RED + 16}")
    k(f"ds_read_b128 v[72:75], v23 offset:{L_RED + 2048}")
    k(f"ds_read_b128 v[76:79], v23 offset:{L_RED + 2064}")
    k("s_waitcnt lgkmcnt(0)")
    for i in range(8):
        k(f"v_add_f32 v{64 + i}, v{64 + i}, v{72 + i}")
    for i in range(8):
        k(f"v_fma_f32 v{64 + i}, v{104 + i}, v{64 + i}, v{96 + i}")
    k("s_cmp_lg_u32 s3, 0")
    k("s_cbranch_scc1 L_MLP_nox2")
    k(f"ds_write_b128 v23, v[64:67] offset:{L_X2}")
    k(f"ds_write_b128 v23, v[68:71] offset:{L_X2 + 16}")
    k.label("L_MLP_nox2")
    k("v_add_f32 v80, v64, v65")
    for i in range(2, 8):
        k(f"v_add_f32 v80, v80, v{64 + i}")
    allreduce("v80", "v81", "v_add_f32")
    k(f"v_mul_f32 v80, 0x{f2u(1.0 / 512):08x}, v80")
    for i in range(8):
        k(f"v_sub_f32 v{72 + i}, v{64 + i}, v80")
    k("v_mul_f32 v82, v72, v72")
    for i in range(1, 8):
        k(f"v_fmac_f32 v82, v{72 + i}, v{72 + i}")
    allreduce("v82", "v81", "v_add_f32")
    k(f"v_mov_b32 v83, 0x{f2u(1e-5):08x}")
    k(f"v_fmac_f32 v83, 0x{f2u(1.0 / 512):08x}, v82")
    k("v_rsq_f32 v83, v83")
    for i in range(8):
        k(f"v_mul_f32 v{72 + i}, v{72 + i}, v83")
    for i in range(8):
        k(f"v_fma_f32 v{72 + i}, v{72 + i}, v{120 + i}, v{112 + i}")
    pack8(72, 84)
    k("s_lshl_b32 s7, s3, 10")
    k("v_add_u32 v23, s7, v1")
    k(f"ds_write_b128 v23, v[84:87] offset:{H2}")
    k("v_and_b32 v22, 1, v0")
    k("v_lshlrev_b32 v22, 2, v22")
    k("v_add_u32 v22, v22, v28")
    k("s_mul_i32 s7, s3, 1152")
    k("v_lshl_add_u32 v22, v22, 4, s7")
    k("s_waitcnt lgkmcnt(0)")
    k(f"ds_read_b128 v[16:19], v22 offset:{H2}")
    k("s_waitcnt lgkmcnt(0)")
    for i in range(8):
        k(f"v_mfma_f32_16x16x32_bf16 v[{64 + 4 * i}:{67 + 4 * i}], v[16:19], v[{32 + 4 * i}:{35 + 4 * i}], 0")
    for i in range(8):
        k(f"v_add_f32_dpp v{96 + i}, v{64 + 4 * i + 1}, v{64 + 4 * i} row_ror:8 row_mask:0xf bank_mask:0xf")
    k("s_lshl_b32 s7, s3, 8")
    k("v_lshl_add_u32 v23, v0, 5, s7")
    k("s_mov_b64 exec, 0xff")
    k(f"ds_write_b128 v23, v[96:99] offset:{T3R}")
    k(f"ds_write_b128 v23, v[100:103] offset:{T3R + 16}")
    k("s_mov_b64 exec, -1")
    k("v_lshlrev_b32 v23, 2, v0")
    k("s_waitcnt lgkmcnt(0)")
    k("s_barrier")
    for w in range(8):
        k(f"ds_read_b32 v{64 + w}, v23 offset:{T3R + w * 256}")
    k("s_waitcnt lgkmcnt(0)")
    k("v_add_f32 v64, v64, v65")
    k("v_add_f32 v66, v66, v67")
    k("v_add_f32 v68, v68, v69")
    k("v_add_f32 v70, v70, v71")
    k("v_add_f32 v64, v64, v66")
    k("v_add_f32 v68, v68, v70")
    k("v_add_f32 v64, v64, v68")
    silu_inplace([64], [65])
    k("v_cvt_pk_bf16_f32 v64, v64, v64")
    k("s_lshl_b32 s7, s3, 7")
    k("v_lshl_add_u32 v23, v0, 1, s7")
    k(f"ds_write_b16 v23, v64 offset:{H1}")
    k("v_and_b32 v22, 1, v0")
    k("v_lshlrev_b32 v22, 2, v22")
    k("v_add_u32 v22, v22, v28")
    k("v_lshl_add_u32 v22, v22, 4, s7")
    k("s_waitcnt lgkmcnt(0)")
    k(f"ds_read_b128 v[16:19], v22 offset:{H1}")
    for i in range(8):
        k(f"v_mov_b32 v{97 + 2 * i}, s6")
    k("s_lshl_b32 s7, s81, 12")
    k("s_lshl_b32 s68, s3, 9")
    k("s_add_u32 s7, s7, s68")
    k(f"s_add_u32 s7, s7, {WS_E3}")
    k("v_lshl_add_u32 v23, v0, 6, s7")
    k("s_waitcnt lgkmcnt(0)")
    for i in range(8):
        k(f"v_mfma_f32_16x16x32_bf16 v[{64 + 4 * i}:{67 + 4 * i}], v[16:19], a[{4 * i}:{4 * i + 3}], 0")
    for i in range(8):
        k(f"v_add_f32_dpp v{96 + 2 * i}, v{64 + 4 * i + 1}, v{64 + 4 * i} row_ror:8 row_mask:0xf bank_mask:0xf")
    k("s_mov_b64 exec, 0xff")
    for i in range(4):
        k(f"global_store_dwordx4 v23, v[{96 + 4 * i}:{99 + 4 * i}], s[8:9] offset:{16 * i} sc1")
    k("s_mov_b64 exec, -1")
    stamp(6)
    k("s_cmp_lg_u32 s3, 0")
    k("s_cbranch_scc1 L_end")
    k("s_cmp_ge_u32 s81, 16")
    k("s_cbranch_scc1 L_end")
    k("s_lshl_b32 s7, s81, 7")
    k("v_lshl_add_u32 v22, v29, 3, s7")
    k(f"ds_read_b64 v[112:113], v22 offset:{L_X2}")
    k("v_lshlrev_b32 v24, 1, v22")
    k("v_lshl_add_u32 v24, v28, 12, v24")
    k(f"v_add_u32 v24, {WS_E3}, v24")
    top = poll_begin()
    for kk in range(7):
        k(f"v_add_u32 v23, {kk * 16384}, v24")
        k(f"global_load_dwordx4 v[{64 + 4 * kk}:{67 + 4 * kk}], v23, s[8:9] sc1")
    k("s_waitcnt vmcnt(0)")
    check_tags([f"v{65 + 2 * i}" for i in range(14)], "v100", "v101", top)
    stamp(7)
    for kk in range(1, 7):
        k(f"v_add_f32 v64, v64, v{64 + 4 * kk}")
        k(f"v_add_f32 v66, v66, v{66 + 4 * kk}")
    allreduce("v64", "v65", "v_add_f32", steps=("x16", "x32"))
    allreduce("v66", "v65", "v_add_f32", steps=("x16", "x32"))
    k("v_lshlrev_b32 v68, 16, v21")
    k("v_and_b32 v69, 0xffff0000, v21")
    k("s_waitcnt lgkmcnt(0)")
    k("v_fma_f32 v64, v68, v64, v112")
    k("v_fma_f32 v66, v69, v66, v113")
    k("v_cvt_pk_bf16_f32 v64, v64, v66")
    k("v_lshrrev_b32 v22, 1, v22")
    k("s_mov_b64 exec, 0xffff")
    k("global_store_dword v22, v64, s[36:37]")
    k("s_mov_b64 exec, -1")
    k("s_cmp_lg_u32 s81, 0")
    k("s_cbranch_scc1 L_end2")
    k("v_mov_b32 v22, 0")
    k("v_mov_b32 v23, s6")
    k("s_mov_b64 exec, 1")
    k("global_store_dword v22, v23, s[8:9]")
    k("s_mov_b64 exec, -1")
    k.label("L_end2")
    stamp(8)
    k("s_endpgm")

    k.raw('.section .rodata,"a"')
    k.raw(".p2align 6")
    k.raw(f".amdhsa_kernel {NAME}_kernel")
    k.raw("  .amdhsa_next_free_vgpr 224")
    k.raw("  .amdhsa_next_free_sgpr 100")
    k.raw("  .amdhsa_accum_offset 128")
    k.raw("  .amdhsa_group_segment_fixed_size 0")
    k.raw("  .amdhsa_kernarg_size 104")
    k.raw("  .amdhsa_user_sgpr_count 2")
    k.raw("  .amdhsa_user_sgpr_kernarg_segment_ptr 1")
    k.raw("  .amdhsa_system_sgpr_workgroup_id_x 1")
    k.raw(".end_amdhsa_kernel")
    return k.text()


if __name__ == "__main__":
    out = sys.argv[1] if len(sys.argv) > 1 else f"cdna_kernels/{NAME}.s"
    st = "--stamps" in sys.argv
    kw = {}
    for a in sys.argv[2:]:
        if "=" in a:
            kk, vv = a.split("=")
            kw[kk] = int(vv)
    open(out, "w").write(gen(stamps=st, **kw))
    print("wrote", out)
```

```python
import math
import struct
import sys

sys.path.insert(0, "code")
from asmdsl import K

NAME = "adaLN_cond__gqa_block_cached__dense_activation_silu__decode"


def f2u(x):
    return struct.unpack("<I", struct.pack("<f", x))[0]


WS_EPOCH = 0x0
WS_CNT = 0x1000
WS_MOD = 0x10000
WS_Q = 0x14000
WS_ML = 0x18000
WS_O1 = 0x20000
WS_E2 = 0x120000
WS_E3 = 0x130000
WS_STAMP = 0x200000
WS_LOG = 0x300000

L_SCR = 0
L_QF = L_SCR
L_RED = L_SCR + 1024
L_MM = L_RED + 16384
L_LL = L_MM + 128
L_RED2 = L_MM + 256
L_X2 = L_RED2
L_W = 22528
assert L_RED2 + 4096 <= L_W
LDS_TOTAL = L_W + 131072

TILES = 2048
POLL_LIMIT = 200000
L_FLAG = L_RED2 + 4096
assert L_FLAG + 4 <= L_W

SEL_LO, SEL_HI = "s14", "s15"


def gen(stamps=False, ND=4, PW=4, DBG=0):
    NSTATWG = 16 + ND
    POOL0 = 32 * NSTATWG
    SUBPOOL = (TILES - POOL0) // 4
    k = K()
    uid = [0]

    def lab(p):
        uid[0] += 1
        return f"L_{p}_{uid[0]}"

    def stamp(idx):
        if DBG:
            k("s_memrealtime s[92:93]")
            k("s_waitcnt lgkmcnt(0)")
            k("v_mov_b32 v30, s92")
            k("v_mov_b32 v31, 0")
            k("s_mov_b64 exec, 1")
            k(f"global_atomic_umax v31, v30, s[38:39] offset:{(idx + 1) * 4}")
            if idx == 0:
                k("v_not_b32 v30, v30")
                k(f"global_atomic_umax v31, v30, s[38:39] offset:0")
            k("s_mov_b64 exec, -1")
            return
        if not stamps:
            return
        k("s_memrealtime s[92:93]")
        k("s_waitcnt lgkmcnt(0)")
        k("v_mov_b32 v30, s92")
        k(f"v_mov_b32 v31, s94")
        k("s_mov_b64 exec, 1")
        k(f"global_store_dword v31, v30, s[8:9] offset:{idx * 4}")
        k("s_mov_b64 exec, -1")

    def allreduce(v, t, op, steps=("r1", "r2", "r4", "r8", "x16", "x32")):
        for s in steps:
            if s[0] == "r":
                k(f"{op}_dpp {v}, {v}, {v} row_ror:{s[1:]} row_mask:0xf bank_mask:0xf")
            else:
                k(f"v_mov_b32 {t}, {v}")
                k(f"v_permlane{s[1:]}_swap_b32 {v}, {t}")
                k(f"{op} {v}, {v}, {t}")

    def check_tags(tags, tmn, tmx, retry):
        def chain(op3, op2, dst):
            rest = list(tags)
            if len(rest) >= 3:
                k(f"{op3} {dst}, {rest[0]}, {rest[1]}, {rest[2]}")
                rest = rest[3:]
            else:
                k(f"{op2} {dst}, {rest[0]}, {rest[1]}")
                rest = rest[2:]
            while len(rest) >= 2:
                k(f"{op3} {dst}, {dst}, {rest[0]}, {rest[1]}")
                rest = rest[2:]
            if rest:
                k(f"{op2} {dst}, {dst}, {rest[0]}")
        if len(tags) == 1:
            k(f"v_cmp_ne_u32 vcc, s6, {tags[0]}")
            k("s_nop 0")
            k("s_or_b64 s[12:13], vcc, vcc")
        else:
            chain("v_min3_u32", "v_min_u32", tmn)
            chain("v_max3_u32", "v_max_u32", tmx)
            k(f"v_cmp_ne_u32 vcc, s6, {tmn}")
            k(f"v_cmp_ne_u32 s[12:13], s6, {tmx}")
            k("s_or_b64 s[12:13], s[12:13], vcc")
        k(f"s_cbranch_scc1 {retry}")

    def poll_begin():
        top = lab("poll")
        go = lab("go")
        k("s_mov_b32 s7, 0")
        k(f"s_branch {go}")
        k.label(top)
        k("s_add_u32 s7, s7, 1")
        k(f"s_cmp_ge_u32 s7, {POLL_LIMIT}")
        k("s_cbranch_scc1 L_end")
        k.label(go)
        return top

    def perm_frag(dst, src, i):
        sel = SEL_HI if (i & 1) else SEL_LO
        for jp in range(4):
            lo = src + 4 * (2 * jp) + (i >> 1)
            hi = src + 4 * (2 * jp + 1) + (i >> 1)
            k(f"v_perm_b32 v{dst + jp}, v{hi}, v{lo}, {sel}")

    def gemv_tile(src, afrag, dreg, btmp):
        sets = [btmp, btmp + 4, btmp + 8]
        perm_frag(sets[0], src, 0)
        perm_frag(sets[1], src, 1)
        for i in range(8):
            if i + 2 < 8:
                perm_frag(sets[(i + 2) % 3], src, i + 2)
            b = sets[i % 3]
            k(f"v_mfma_f32_16x16x32_bf16 v[{dreg + 4 * i}:{dreg + 4 * i + 3}], v[{afrag}:{afrag + 3}], v[{b}:{b + 3}], 0")

    def unpack8(src, dst):
        for i in range(4):
            k(f"v_lshlrev_b32 v{dst + 2 * i}, 16, v{src + i}")
            k(f"v_and_b32 v{dst + 2 * i + 1}, 0xffff0000, v{src + i}")

    def unpack_gr(srcs, dst):
        for i, s in enumerate(srcs):
            k(f"v_lshlrev_b32 v{dst + 2 * i}, 16, v{s}")
            k(f"v_and_b32 v{dst + 2 * i + 1}, 0xffff0000, v{s}")

    def silu_inplace(regs, tmp):
        for r, t in zip(regs, tmp):
            k(f"v_mul_f32 v{t}, s58, v{r}")
        for r, t in zip(regs, tmp):
            k(f"v_exp_f32 v{t}, v{t}")
        for r, t in zip(regs, tmp):
            k(f"v_add_f32 v{t}, 1.0, v{t}")
        for r, t in zip(regs, tmp):
            k(f"v_rcp_f32 v{t}, v{t}")
        for r, t in zip(regs, tmp):
            k(f"v_mul_f32 v{r}, v{r}, v{t}")

    def pack8(src, dst):
        for i in range(4):
            k(f"v_cvt_pk_bf16_f32 v{dst + i}, v{src + 2 * i}, v{src + 2 * i + 1}")

    k.raw(f"; @launch grid=(256,1,1) block=(512,1,1) lds={LDS_TOTAL}")
    k.raw('.amdgcn_target "amdgcn-amd-amdhsa--gfx950"')
    k.raw(".text")
    k.raw(f".globl {NAME}_kernel")
    k.raw(".p2align 8")
    k.raw(f".type {NAME}_kernel,@function")
    k.label(f"{NAME}_kernel")
    k("s_cmp_ge_u32 s2, 256")
    k("s_cbranch_scc1 L_end")
    k("s_load_dwordx16 s[16:31], s[0:1], 0")
    k("s_load_dwordx8 s[32:39], s[0:1], 64")
    k("s_load_dwordx2 s[8:9], s[0:1], 96")
    k("v_lshrrev_b32 v1, 6, v0")
    k("v_and_b32 v0, 63, v0")
    k("v_readfirstlane_b32 s3, v1")
    k("s_lshr_b32 s4, s2, 5")
    k("s_and_b32 s5, s2, 31")
    k("s_mov_b32 s14, 0x05040100")
    k("s_mov_b32 s15, 0x07060302")
    k(f"s_mov_b32 s56, 0x{f2u((128 ** -0.5) * math.log2(math.e)):08x}")
    k(f"s_mov_b32 s57, 0x{f2u(8.0):08x}")
    k(f"s_mov_b32 s58, 0x{f2u(-math.log2(math.e)):08x}")
    k("v_lshlrev_b32 v1, 4, v0")
    k("v_add_u32 v2, 0x1000, v1")
    k("v_bfe_u32 v3, v0, 2, 2")
    k("v_lshlrev_b32 v3, 8, v3")
    k("v_lshrrev_b32 v28, 4, v0")
    k("v_lshl_add_u32 v3, v28, 6, v3")
    k("v_and_b32 v29, 3, v0")
    k("v_lshl_add_u32 v3, v29, 4, v3")
    k("v_add_u32 v4, 0x1000, v3")
    k("v_and_b32 v29, 15, v0")
    k("v_bfe_u32 v26, v0, 2, 2")
    k("v_mov_b32 v5, 0")
    k("v_mov_b32 v6, 0")
    k("v_mov_b32 v24, 0x0000ffff")
    k("v_mov_b32 v25, 0xffff0000")
    k("v_cmp_eq_u32 vcc, 0, v26")
    k("v_cndmask_b32 v5, v5, v24, vcc")
    k("v_cmp_eq_u32 vcc, 1, v26")
    k("v_cndmask_b32 v5, v5, v25, vcc")
    k("v_cmp_eq_u32 vcc, 2, v26")
    k("v_cndmask_b32 v6, v6, v24, vcc")
    k("v_cmp_eq_u32 vcc, 3, v26")
    k("v_cndmask_b32 v6, v6, v25, vcc")
    k("v_mov_b32 v7, 0xf149f2ca")
    k("v_mov_b32 v8, 0")
    k("v_mov_b32 v9, 0")
    k("v_mov_b32 v10, 0")
    k("v_mov_b32 v11, 1")
    k(f"ds_write_b32 v10, v10 offset:{L_FLAG}")
    for i in range(32):
        k(f"v_accvgpr_write_b32 a{64 + i}, 0")
    k("v_lshrrev_b32 v27, 3, v29")
    k("v_lshlrev_b32 v27, 5, v27")
    k("v_lshl_add_u32 v27, v28, 3, v27")
    k("v_and_b32 v26, 7, v29")
    k("v_lshlrev_b32 v26, 4, v26")
    k("v_and_b32 v25, 1, v29")
    k("v_lshlrev_b32 v25, 5, v25")
    k("v_lshl_add_u32 v25, v28, 3, v25")
    k("s_waitcnt lgkmcnt(0)")
    k("s_load_dword s6, s[8:9], 0")
    k("s_lshl_b32 s7, s4, 24")
    k("s_add_u32 s40, s18, s7")
    k("s_addc_u32 s41, s19, 0")
    k("s_mov_b32 s42, 0x1000000")
    k("s_mov_b32 s43, 0x20000")
    k("s_add_u32 s44, s20, s7")
    k("s_addc_u32 s45, s21, 0")
    k("s_mov_b32 s46, 0x1000000")
    k("s_mov_b32 s47, 0x20000")
    if stamps:
        k("s_lshl_b32 s94, s2, 3")
        k("s_add_u32 s94, s94, s3")
        k("s_lshl_b32 s94, s94, 6")
        k("s_lshl_b32 s95, s94, 3")
        k(f"s_add_u32 s95, s95, {WS_LOG}")
        k(f"s_add_u32 s94, s94, {WS_STAMP}")
    stamp(0)
    k("s_mov_b32 s80, 0")
    k("s_mov_b32 s81, 0")
    k("s_cmp_lt_u32 s5, 6")
    k("s_cbranch_scc1 L_roleA")
    k("s_cmp_lt_u32 s5, 14")
    k("s_cbranch_scc1 L_roleB")
    k("s_cmp_lt_u32 s5, 22")
    k("s_cbranch_scc1 L_roleT2")
    k("s_and_b32 s7, s4, 1")
    k("s_sub_u32 s7, 26, s7")
    k("s_cmp_lt_u32 s5, s7")
    k("s_cbranch_scc1 L_roleMLP")
    k("s_branch L_common0")

    def stage_finish(ws_off):
        for i in range(8):
            k(f"v_add_f32_dpp v{104 + i}, v{32 + 4 * i + 1}, v{32 + 4 * i} row_ror:8 row_mask:0xf bank_mask:0xf")
        k("v_lshlrev_b32 v112, 5, v0")
        k("s_lshl_b32 s7, s3, 8")
        k(f"s_add_u32 s7, s7, {L_RED}")
        k("v_add_u32 v112, s7, v112")
        k("s_mov_b64 exec, 0xff")
        k("ds_write_b128 v112, v[104:107]")
        k("ds_write_b128 v112, v[108:111] offset:16")
        k("s_mov_b64 exec, -1")
        k("s_waitcnt lgkmcnt(0)")
        k("s_barrier")
        k("s_cmp_lg_u32 s3, 0")
        k("s_cbranch_scc1 L_common")
        k("v_lshlrev_b32 v112, 3, v0")
        for w in range(8):
            k(f"ds_read_b64 v[{32 + 2 * w}:{33 + 2 * w}], v112 offset:{L_RED + w * 256}")
        k("s_lshl_b32 s7, s81, 8")
        k(f"s_add_u32 s7, s7, {ws_off}")
        k("v_add_u32 v113, s7, v112")
        k("s_waitcnt lgkmcnt(0)")
        for w in range(1, 8):
            k(f"v_add_f32 v32, v32, v{32 + 2 * w}")
            k(f"v_add_f32 v33, v33, v{33 + 2 * w}")
        k("v_cvt_pk_bf16_f32 v34, v32, v33")
        k("v_mov_b32 v35, s6")
        k("s_waitcnt vmcnt(0)")
        k("s_mov_b64 exec, 0xffffffff")
        k("global_store_dwordx2 v113, v[34:35], s[8:9] sc1")
        k("s_mov_b64 exec, -1")
        stamp(1)
        k("s_branch L_common")

    k.label("L_roleA")
    k("s_mov_b32 s80, 1")
    k("s_mul_i32 s81, s4, 6")
    k("s_add_u32 s81, s81, s5")
    k("s_mov_b32 s48, s34")
    k("s_mov_b32 s49, s35")
    k(f"s_mov_b32 s50, {512 * 6144}")
    k("s_mov_b32 s51, 0x20000")
    k("s_movk_i32 s7, 6144")
    k("v_mul_lo_u32 v112, v27, s7")
    k("v_add_u32 v112, v112, v26")
    k(f"s_mul_i32 s66, s3, {64 * 6144}")
    k("s_lshl_b32 s7, s81, 7")
    k("s_add_u32 s66, s66, s7")
    k("s_lshl_b32 s7, s3, 6")
    k("v_add_u32 v113, s7, v25")
    k("v_lshlrev_b32 v113, 1, v113")
    k("global_load_dwordx4 v[96:99], v113, s[32:33]")
    for e in range(8):
        k(f"buffer_load_dwordx4 v[{64 + 4 * e}:{67 + 4 * e}], v112, s[48:51], s66 offen nt")
        if e < 7:
            k("s_add_u32 s66, s66, 6144")
    k("s_or_b32 s7, s81, s3")
    k("s_cmp_lg_u32 s7, 0")
    k("s_cbranch_scc1 L_A_nozero")
    k("v_lshlrev_b32 v114, 8, v0")
    k(f"v_add_u32 v114, {WS_CNT}, v114")
    k("s_mov_b64 exec, 0xffffffff")
    k("global_store_dword v114, v10, s[8:9] sc1")
    k("s_mov_b64 exec, -1")
    k("s_waitcnt vmcnt(9)")
    k("s_branch L_A_go")
    k.label("L_A_nozero")
    k("s_waitcnt vmcnt(8)")
    k.label("L_A_go")
    unpack8(96, 104)
    silu_inplace(list(range(104, 112)), list(range(112, 120)))
    pack8(104, 16)
    k("s_waitcnt vmcnt(0) lgkmcnt(0)")
    k("s_add_u32 s6, s6, 1")
    gemv_tile(64, 16, 32, 96)
    stage_finish(WS_MOD)

    k.label("L_roleB")
    k("s_mov_b32 s80, 2")
    k("s_lshl_b32 s81, s4, 3")
    k("s_add_u32 s81, s81, s5")
    k("s_sub_u32 s81, s81, 6")
    k("s_mov_b32 s48, s22")
    k("s_mov_b32 s49, s23")
    k(f"s_mov_b32 s50, {512 * 8192}")
    k("s_mov_b32 s51, 0x20000")
    k("v_lshlrev_b32 v112, 13, v27")
    k("v_add_u32 v112, v112, v26")
    k("s_lshl_b32 s66, s3, 19")
    k("s_lshl_b32 s7, s81, 7")
    k("s_add_u32 s66, s66, s7")
    k("s_lshl_b32 s7, s3, 6")
    k("v_add_u32 v113, s7, v25")
    k("v_lshlrev_b32 v114, 1, v113")
    k("global_load_dwordx4 v[96:99], v1, s[16:17]")
    k("global_load_dwordx4 v[100:103], v114, s[16:17]")
    for e in range(8):
        k(f"buffer_load_dwordx4 v[{64 + 4 * e}:{67 + 4 * e}], v112, s[48:51], s66 offen nt")
        if e < 7:
            k("s_add_u32 s66, s66, 8192")
    k("v_lshlrev_b32 v113, 2, v113")
    k(f"v_add_u32 v113, {WS_MOD}, v113")
    k("s_waitcnt vmcnt(8)")
    unpack8(96, 104)
    k("v_add_f32 v120, v104, v105")
    for i in range(2, 8):
        k(f"v_add_f32 v120, v120, v{104 + i}")
    allreduce("v120", "v121", "v_add_f32")
    k(f"v_mul_f32 v120, 0x{f2u(1.0 / 512):08x}, v120")
    for i in range(8):
        k(f"v_sub_f32 v{104 + i}, v{104 + i}, v120")
    k("v_mul_f32 v122, v104, v104")
    for i in range(1, 8):
        k(f"v_fmac_f32 v122, v{104 + i}, v{104 + i}")
    allreduce("v122", "v121", "v_add_f32")
    k(f"v_mov_b32 v123, 0x{f2u(1e-5):08x}")
    k(f"v_fmac_f32 v123, 0x{f2u(1.0 / 512):08x}, v122")
    k("v_rsq_f32 v123, v123")
    unpack8(100, 104)
    for i in range(8):
        k(f"v_sub_f32 v{104 + i}, v{104 + i}, v120")
    for i in range(8):
        k(f"v_mul_f32 v{104 + i}, v{104 + i}, v123")
    k("s_waitcnt lgkmcnt(0)")
    k("s_add_u32 s6, s6, 1")
    k("v_and_b32 v114, 1, v0")
    k("v_lshlrev_b32 v114, 11, v114")
    k("s_lshl_b32 s66, s3, 8")
    k(f"s_add_u32 s66, s66, {WS_MOD}")
    k("v_add_u32 v114, s66, v114")
    top = poll_begin()
    k("s_mov_b64 exec, 3")
    k("global_load_dwordx2 v[32:33], v114, s[8:9] sc1")
    k("s_waitcnt vmcnt(0)")
    k("v_cmp_ne_u32 vcc, s6, v33")
    k("s_mov_b64 exec, -1")
    k(f"s_cbranch_vccnz {top}")
    k("global_load_dwordx4 v[32:35], v113, s[8:9] sc1")
    k("global_load_dwordx4 v[36:39], v113, s[8:9] offset:16 sc1")
    k("global_load_dwordx4 v[40:43], v113, s[8:9] offset:2048 sc1")
    k("global_load_dwordx4 v[44:47], v113, s[8:9] offset:2064 sc1")
    k("s_waitcnt vmcnt(0)")
    check_tags([f"v{33 + 2 * i}" for i in range(8)], "v48", "v49", top)
    unpack_gr([32, 34, 36, 38], 112)
    unpack_gr([40, 42, 44, 46], 120)
    for i in range(8):
        k(f"v_add_f32 v{120 + i}, 1.0, v{120 + i}")
    for i in range(8):
        k(f"v_fma_f32 v{104 + i}, v{104 + i}, v{120 + i}, v{112 + i}")
    pack8(104, 16)
    gemv_tile(64, 16, 32, 96)
    stage_finish(WS_Q)

    k.label("L_roleT2")
    k("s_mov_b32 s80, 3")
    k("s_lshl_b32 s81, s4, 3")
    k("s_add_u32 s81, s81, s5")
    k("s_sub_u32 s81, s81, 14")
    k("s_mov_b32 s48, s24")
    k("s_mov_b32 s49, s25")
    k(f"s_mov_b32 s50, {4096 * 1024}")
    k("s_mov_b32 s51, 0x20000")
    k("v_lshlrev_b32 v112, 13, v28")
    k("v_lshl_add_u32 v112, v29, 4, v112")
    k("s_lshr_b32 s66, s81, 2")
    k("s_lshl_b32 s66, s66, 18")
    k("s_lshl_b32 s7, s3, 15")
    k("s_add_u32 s66, s66, s7")
    k("s_and_b32 s7, s81, 3")
    k("s_lshl_b32 s7, s7, 8")
    k("s_add_u32 s66, s66, s7")
    k("s_lshl_b32 s67, s3, 13")
    k(f"s_add_u32 s67, s67, {L_W}")
    for e in range(8):
        k("s_mov_b32 m0, s67")
        if e >= PW:
            k(f"s_waitcnt vmcnt({PW - 1})")
        k(f"buffer_load_dwordx4 v112, s[48:51], s66 offen nt lds")
        if e < 7:
            k("s_add_u32 s66, s66, 1024")
            k("s_add_u32 s67, s67, 1024")
    k("s_branch L_common0")

    k.label("L_roleMLP")
    k("s_mov_b32 s80, 4")
    k("s_lshr_b32 s81, s4, 1")
    k("s_mul_i32 s81, s81, 7")
    k("s_and_b32 s7, s4, 1")
    k("s_lshl_b32 s7, s7, 2")
    k("s_add_u32 s81, s81, s7")
    k("s_add_u32 s81, s81, s5")
    k("s_sub_u32 s81, s81, 22")
    k("s_mov_b32 s48, s28")
    k("s_mov_b32 s49, s29")
    k(f"s_mov_b32 s50, {512 * 3584}")
    k("s_mov_b32 s51, 0x20000")
    k("s_mov_b32 s52, s30")
    k("s_mov_b32 s53, s31")
    k(f"s_mov_b32 s54, {1792 * 1024}")
    k("s_mov_b32 s55, 0x20000")
    k("s_movk_i32 s7, 3584")
    k("v_mul_lo_u32 v112, v27, s7")
    k("v_add_u32 v112, v112, v26")
    k("v_lshlrev_b32 v113, 10, v27")
    k("v_add_u32 v113, v113, v26")
    k(f"s_mul_i32 s66, s3, {64 * 3584}")
    k("s_lshl_b32 s7, s81, 7")
    k("s_add_u32 s66, s66, s7")
    k("s_lshl_b32 s67, s3, 13")
    k(f"s_add_u32 s67, s67, {L_W}")
    for e in range(8):
        k("s_mov_b32 m0, s67")
        if e >= PW:
            k(f"s_waitcnt vmcnt({PW - 1})")
        k(f"buffer_load_dwordx4 v112, s[48:51], s66 offen nt lds")
        if e < 7:
            k("s_add_u32 s66, s66, 3584")
            k("s_add_u32 s67, s67, 1024")
    k("s_lshl_b32 s66, s81, 16")
    k("s_lshl_b32 s7, s3, 7")
    k("s_add_u32 s66, s66, s7")
    k("s_lshl_b32 s67, s3, 13")
    k(f"s_add_u32 s67, s67, {65536 + L_W}")
    for e in range(8):
        k("s_mov_b32 m0, s67")
        k(f"s_waitcnt vmcnt({PW - 1})")
        k(f"buffer_load_dwordx4 v113, s[52:55], s66 offen nt lds")
        if e < 7:
            k("s_add_u32 s66, s66, 1024")
            k("s_add_u32 s67, s67, 1024")
    k.label("L_common0")
    k("s_waitcnt lgkmcnt(0)")
    k("s_barrier")
    k("s_add_u32 s6, s6, 1")
    k.label("L_common")
    k("s_lshl_b32 s66, s5, 3")
    k("s_add_u32 s66, s66, s3")
    k("s_lshl_b32 s66, s66, 13")
    k("s_add_u32 s67, s66, 0x200000")
    k(f"s_mul_i32 s59, s5, {ND}")
    k("s_add_u32 s59, s59, s3")
    k("s_add_u32 s59, s59, 512")
    k("s_lshl_b32 s59, s59, 13")
    k(f"s_cmp_lt_u32 s3, {ND}")
    k("s_cselect_b32 s64, 1, 0")
    k("s_lshr_b32 s7, s5, 3")
    k("s_add_u32 s7, s7, s3")
    k("s_and_b32 s7, s7, 3")
    k(f"s_add_u32 s62, s7, {POOL0}")
    k("s_lshl_b32 s63, s4, 2")
    k("s_add_u32 s63, s63, s7")
    k("s_lshl_b32 s63, s63, 8")
    k(f"s_add_u32 s63, s63, {WS_CNT}")
    k("v_mov_b32 v10, s63")
    k("s_mov_b32 s63, 1")
    k("s_mov_b32 s60, 1")
    k("s_mov_b32 s61, 1")
    k("s_cmp_eq_u32 s3, 0")
    k("s_cbranch_scc1 L_pollq")

    def issue_k(slot, soff, pace=None):
        for j in range(8):
            vo = "v3" if j < 4 else "v4"
            if pace is not None:
                k(f"s_waitcnt vmcnt({pace - 1})")
            k(f"buffer_load_dwordx4 a[{32 * slot + 4 * j}:{32 * slot + 4 * j + 3}], {vo}, s[40:43], {soff} offen offset:{(j % 4) * 1024} nt")

    def issue_v(slot, soff, pace=None):
        for j in range(8):
            vo = "v1" if j < 4 else "v2"
            b = 64 + 32 * slot + 4 * j
            if pace is not None:
                k(f"s_waitcnt vmcnt({pace - 1})")
            k(f"buffer_load_dwordx4 v[{b}:{b + 3}], {vo}, s[44:47], {soff} offen offset:{(j % 4) * 1024} nt")

    issue_k(0, "s66", PW)
    issue_v(0, "s66", PW)
    issue_k(1, "s67", PW)
    issue_v(1, "s67", PW)
    k("v_mov_b32 v32, 0")
    top = poll_begin()
    k(f"ds_read_b32 v33, v32 offset:{L_FLAG}")
    k("s_waitcnt lgkmcnt(0)")
    k("v_readfirstlane_b32 s65, v33")
    k("s_cmp_eq_u32 s65, 0")
    k(f"s_cbranch_scc1 {top}")
    k(f"ds_read_b128 v[12:15], v1 offset:{L_QF}")
    k("s_waitcnt lgkmcnt(0)")
    k("s_branch L_haveq")

    k.label("L_pollq")
    k("s_setprio 3")
    k("v_and_b32 v32, 3, v0")
    k("v_lshlrev_b32 v32, 9, v32")
    k("v_lshl_add_u32 v32, v28, 7, v32")
    k("v_bfe_u32 v33, v0, 2, 2")
    k("v_lshl_add_u32 v32, v33, 5, v32")
    k("s_lshl_b32 s7, s4, 11")
    k(f"s_add_u32 s7, s7, {WS_Q}")
    k("v_add_u32 v32, s7, v32")
    k("v_lshl_add_u32 v33, v0, 8, s7")
    top = poll_begin()
    k("s_mov_b64 exec, 0xff")
    k("global_load_dwordx2 v[36:37], v33, s[8:9] sc1")
    k("s_waitcnt vmcnt(0)")
    k("v_cmp_ne_u32 vcc, s6, v37")
    k("s_mov_b64 exec, -1")
    k(f"s_cbranch_vccnz {top}")
    k("global_load_dwordx4 v[36:39], v32, s[8:9] sc1")
    k("global_load_dwordx4 v[40:43], v32, s[8:9] offset:16 sc1")
    k("s_waitcnt vmcnt(0)")
    check_tags(["v37", "v39", "v41", "v43"], "v44", "v45", top)
    k("v_mov_b32 v12, v36")
    k("v_mov_b32 v13, v38")
    k("v_mov_b32 v14, v40")
    k("v_mov_b32 v15, v42")
    k(f"ds_write_b128 v1, v[12:15] offset:{L_QF}")
    k("v_mov_b32 v32, 0")
    k("s_waitcnt lgkmcnt(0)")
    k(f"ds_write_b32 v32, v11 offset:{L_FLAG}")
    k("s_setprio 0")
    issue_k(0, "s66")
    issue_v(0, "s66")
    issue_k(1, "s67")
    issue_v(1, "s67")

    k.label("L_haveq")
    stamp(2)
    k("s_waitcnt vmcnt(16)")
    k("s_branch L_entryA")

    def step(X):
        Y = 1 - X
        nm = "AB"[X]
        k.label(f"L_step{nm}")
        k(f"s_cmp_eq_u32 s{60 + X}, 0")
        k("s_cbranch_scc1 L_loopdone")
        k("s_waitcnt vmcnt(8)")
        if stamps:
            k("s_memrealtime s[92:93]")
            k("s_waitcnt lgkmcnt(0)")
            k("v_mov_b32 v30, s92")
            k("v_mov_b32 v31, s95")
            k("s_add_u32 s95, s95, 4")
            k("s_mov_b64 exec, 1")
            k("global_store_dword v31, v30, s[8:9]")
            k("s_mov_b64 exec, -1")
        k("v_readfirstlane_b32 s7, v9")
        k(f"s_cmp_lt_u32 s7, {SUBPOOL}")
        k(f"s_cselect_b32 s{60 + Y}, 1, 0")
        k("s_lshl_b32 s7, s7, 2")
        k("s_add_u32 s7, s7, s62")
        k("s_lshl_b32 s7, s7, 13")
        k("s_cmp_eq_u32 s63, 1")
        k("s_cselect_b32 s7, s59, s7")
        k(f"s_cselect_b32 s{60 + Y}, s64, s{60 + Y}")
        k("s_mov_b32 s63, 0")
        k(f"s_cmp_lg_u32 s{60 + Y}, 0")
        k(f"s_cbranch_scc1 L_refill{nm}")
        k("s_waitcnt vmcnt(0)")
        k(f"s_branch L_entry{nm}")
        k.label(f"L_refill{nm}")
        k("s_mov_b64 exec, 1")
        k("global_atomic_add v9, v10, v11, s[8:9] sc0")
        k("s_mov_b64 exec, -1")
        issue_k(Y, "s7")
        issue_v(Y, "s7")
        k.label(f"L_entry{nm}")
        for j in range(8):
            k(f"v_mfma_f32_16x16x32_bf16 v[{32 + 4 * j}:{35 + 4 * j}], a[{32 * X + 4 * j}:{32 * X + 4 * j + 3}], v[12:15], 0")
        for rnd in range(3):
            for j in range(8):
                b = j & 3
                ps = [p for p in range(4) if p != b]
                p = ps[rnd]
                n = 4 * ((b - p) % 4)
                D = 32 + 4 * j
                if rnd < 2:
                    k(f"v_add_f32_dpp v{D + b}, v{D + p}, v{D + b} row_ror:{n} row_mask:0xf bank_mask:0xf")
                else:
                    k(f"v_add_f32_dpp v{20 + (j >> 2)}, v{D + p}, v{D + b} row_ror:{n} row_mask:0xf bank_mask:0x{1 << b:x}")
        k("v_fma_f32 v22, v20, s56, -v7")
        k("v_fma_f32 v23, v21, s56, -v7")
        k("v_max_f32 v24, v22, v23")
        k("v_cmp_lt_f32 vcc, s57, v24")
        k(f"s_cbranch_vccz L_norare{nm}")
        k("s_call_b64 s[10:11], L_rare")
        k.label(f"L_norare{nm}")
        k("v_exp_f32 v22, v22")
        k("v_exp_f32 v23, v23")
        k("s_nop 0")
        k("v_cvt_pk_bf16_f32 v24, v22, v22")
        k("v_cvt_pk_bf16_f32 v25, v23, v23")
        k("v_add_f32 v8, v8, v22")
        k("v_and_b32 v16, v24, v5")
        k("v_and_b32 v17, v24, v6")
        k("v_and_b32 v18, v25, v5")
        k("v_and_b32 v19, v25, v6")
        k("v_add_f32 v8, v8, v23")
        k("s_waitcnt vmcnt(17)")
        src = 64 + 32 * X
        sets = [32, 36, 40]
        perm_frag(sets[0], src, 0)
        perm_frag(sets[1], src, 1)
        for i in range(8):
            if i + 2 < 8:
                perm_frag(sets[(i + 2) % 3], src, i + 2)
            b = sets[i % 3]
            k(f"v_mfma_f32_16x16x32_bf16 a[{64 + 4 * i}:{67 + 4 * i}], v[16:19], v[{b}:{b + 3}], a[{64 + 4 * i}:{67 + 4 * i}]")

    step(0)
    step(1)
    k("s_branch L_stepA")

    k.label("L_rare")
    k("s_nop 4")
    k("v_mul_f32 v22, s56, v20")
    k("v_mul_f32 v23, s56, v21")
    k("v_max_f32 v24, v22, v23")
    allreduce("v24", "v25", "v_max_f32", steps=("r4", "r8", "x16", "x32"))
    k("v_max_f32 v24, v24, v7")
    k("v_sub_f32 v25, v7, v24")
    k("v_exp_f32 v25, v25")
    k("v_mov_b32 v7, v24")
    k("v_sub_f32 v22, v22, v24")
    k("v_sub_f32 v23, v23, v24")
    k("v_mul_f32 v8, v8, v25")
    for r in range(4):
        k(f"v_readlane_b32 s{66 + r}, v25, {r}")
    for i in range(8):
        for r in range(4):
            k(f"v_accvgpr_read_b32 v{32 + 4 * i + r}, a{64 + 4 * i + r}")
    for i in range(8):
        for r in range(4):
            k(f"v_mul_f32 v{32 + 4 * i + r}, s{66 + r}, v{32 + 4 * i + r}")
    for i in range(8):
        for r in range(4):
            k(f"v_accvgpr_write_b32 a{64 + 4 * i + r}, v{32 + 4 * i + r}")
    k("s_nop 1")
    k("s_setpc_b64 s[10:11]")

    k.label("L_loopdone")
    k("s_nop 7")
    stamp(3)
    k("s_waitcnt vmcnt(0)")
    for i in range(32):
        k(f"v_accvgpr_read_b32 v{64 + i}, a{64 + i}")
    for i in range(8):
        b = 64 + 4 * i
        k(f"v_permlane32_swap_b32 v{b}, v{b + 2}")
        k(f"v_permlane32_swap_b32 v{b + 1}, v{b + 3}")
    for i in range(8):
        b = 64 + 4 * i
        k(f"v_add_f32 v{b}, v{b}, v{b + 2}")
        k(f"v_add_f32 v{b + 1}, v{b + 1}, v{b + 3}")
    for i in range(8):
        b = 64 + 4 * i
        k(f"v_permlane16_swap_b32 v{b}, v{b + 1}")
    for i in range(8):
        b = 64 + 4 * i
        k(f"v_add_f32 v{96 + i}, v{b}, v{b + 1}")
    allreduce("v8", "v24", "v_add_f32", steps=("r4", "r8", "x16", "x32"))
    k("v_lshlrev_b32 v32, 5, v0")
    k("s_lshl_b32 s7, s3, 11")
    k("v_add_u32 v32, s7, v32")
    k(f"ds_write_b128 v32, v[96:99] offset:{L_RED}")
    k(f"ds_write_b128 v32, v[100:103] offset:{L_RED + 16}")
    k("v_lshlrev_b32 v33, 5, v0")
    k("s_lshl_b32 s7, s3, 2")
    k("v_add_u32 v33, s7, v33")
    k("s_mov_b64 exec, 0xf")
    k(f"ds_write_b32 v33, v7 offset:{L_MM}")
    k(f"ds_write_b32 v33, v8 offset:{L_LL}")
    k("s_mov_b64 exec, -1")
    k("s_waitcnt lgkmcnt(0)")
    k("s_barrier")
    k("s_lshr_b32 s66, s3, 1")
    k("s_lshl_b32 s7, s66, 5")
    k("v_mov_b32 v33, s7")
    k(f"ds_read_b128 v[36:39], v33 offset:{L_MM}")
    k(f"ds_read_b128 v[40:43], v33 offset:{L_MM + 16}")
    k(f"ds_read_b128 v[44:47], v33 offset:{L_LL}")
    k(f"ds_read_b128 v[48:51], v33 offset:{L_LL + 16}")
    k("s_lshl_b32 s7, s3, 8")
    k("v_lshl_add_u32 v34, v0, 2, s7")
    for w in range(8):
        k(f"ds_read_b32 v{52 + w}, v34 offset:{L_RED + w * 2048}")
    k("s_waitcnt lgkmcnt(12)")
    k("v_max3_f32 v60, v36, v37, v38")
    k("s_waitcnt lgkmcnt(8)")
    k("v_max3_f32 v60, v60, v39, v40")
    k("v_max3_f32 v60, v60, v41, v42")
    k("v_max_f32 v60, v60, v43")
    for w in range(8):
        k(f"v_sub_f32 v{36 + w}, v{36 + w}, v60")
    for w in range(8):
        k(f"v_exp_f32 v{36 + w}, v{36 + w}")
    k("s_waitcnt lgkmcnt(0)")
    k("v_mul_f32 v64, v36, v52")
    k("v_mul_f32 v62, v36, v44")
    for w in range(1, 8):
        k(f"v_fmac_f32 v64, v{36 + w}, v{52 + w}")
        k(f"v_fmac_f32 v62, v{36 + w}, v{44 + w}")
    k("v_mov_b32 v65, s6")
    k("v_mov_b32 v61, s6")
    k("v_mov_b32 v63, s6")
    k("s_lshl_b32 s7, s2, 12")
    k(f"s_add_u32 s7, s7, {WS_O1}")
    k("v_lshl_add_u32 v34, v34, 1, s7")
    k("global_store_dwordx2 v34, v[64:65], s[8:9] sc1")
    k("s_and_b32 s7, s3, 1")
    k("s_cmp_lg_u32 s7, 0")
    k("s_cbranch_scc1 L_pubdone")
    k("s_lshl_b32 s7, s4, 2")
    k("s_add_u32 s7, s7, s66")
    k("s_lshl_b32 s7, s7, 5")
    k("s_add_u32 s7, s7, s5")
    k("s_lshl_b32 s7, s7, 4")
    k(f"s_add_u32 s7, s7, {WS_ML}")
    k("v_mov_b32 v34, s7")
    k("s_mov_b64 exec, 1")
    k("global_store_dwordx4 v34, v[60:63], s[8:9] sc1")
    k("s_mov_b64 exec, -1")
    k.label("L_pubdone")
    stamp(4)
    k("s_cmp_eq_u32 s80, 3")
    k("s_cbranch_scc1 L_T2")
    k("s_cmp_eq_u32 s80, 4")
    k("s_cbranch_scc1 L_MLP")
    k.label("L_end")
    k("s_endpgm")

    k.label("L_T2")
    k("s_lshl_b32 s7, s3, 13")
    k(f"s_add_u32 s7, s7, {L_W}")
    k("v_add_u32 v24, s7, v1")
    for e in range(8):
        k(f"ds_read_b128 v[{64 + 4 * e}:{67 + 4 * e}], v24 offset:{e * 1024}")
    k("s_and_b32 s66, s3, 1")
    k("s_lshr_b32 s67, s3, 1")
    k("s_lshr_b32 s68, s81, 2")
    k("s_and_b32 s69, s68, 1")
    k("s_lshl_b32 s69, s69, 1")
    k("s_add_u32 s69, s69, s66")
    k("s_lshl_b32 s7, s4, 5")
    k("s_lshl_b32 s70, s67, 3")
    k("s_add_u32 s7, s7, s70")
    k("s_lshl_b32 s7, s7, 12")
    k("s_lshl_b32 s71, s69, 10")
    k("s_add_u32 s7, s7, s71")
    k(f"s_add_u32 s7, s7, {WS_O1}")
    k("v_add_u32 v24, s7, v1")
    k("v_add_u32 v25, 0x2000, v24")
    k("v_add_u32 v26, 0x4000, v24")
    k("v_add_u32 v27, 0x6000, v24")
    k("s_lshl_b32 s7, s4, 2")
    k("s_add_u32 s7, s7, s69")
    k("s_lshl_b32 s7, s7, 9")
    k(f"s_add_u32 s7, s7, {WS_ML}")
    k("v_and_b32 v22, 31, v0")
    k("v_lshl_add_u32 v22, v22, 4, s7")
    k("s_waitcnt lgkmcnt(0)")
    for i in range(8):
        perm_frag(32 + 4 * i, 64, i)
    k("s_barrier")
    top = poll_begin()
    k("global_load_dwordx4 v[96:99], v22, s[8:9] sc1")
    for kk in range(8):
        a = ["v24", "v25", "v26", "v27"][kk >> 1]
        if kk & 1:
            k(f"v_add_u32 v23, 0x1000, {a}")
            k(f"global_load_dwordx4 v[{64 + 4 * kk}:{67 + 4 * kk}], v23, s[8:9] sc1")
        else:
            k(f"global_load_dwordx4 v[{64 + 4 * kk}:{67 + 4 * kk}], {a}, s[8:9] sc1")
    k("s_waitcnt vmcnt(0)")
    check_tags([f"v{65 + 2 * i}" for i in range(16)] + ["v97", "v99"], "v100", "v101", top)
    stamp(5)
    k("v_mov_b32 v100, v96")
    allreduce("v100", "v101", "v_max_f32", steps=("r1", "r2", "r4", "r8", "x16"))
    k("v_sub_f32 v100, v96, v100")
    k("v_exp_f32 v100, v100")
    k("v_mul_f32 v102, v100, v98")
    allreduce("v102", "v101", "v_add_f32", steps=("r1", "r2", "r4", "r8", "x16"))
    k("v_rcp_f32 v102, v102")
    k("v_mul_f32 v100, v100, v102")
    for kk in range(8):
        k(f"s_add_u32 s7, s70, {kk}")
        k(f"v_readlane_b32 s{72 + kk}, v100, s7")
    k("v_mul_f32 v104, s72, v64")
    k("v_mul_f32 v105, s72, v66")
    for kk in range(1, 8):
        k(f"v_fmac_f32 v104, s{72 + kk}, v{64 + 4 * kk}")
        k(f"v_fmac_f32 v105, s{72 + kk}, v{66 + 4 * kk}")
    k("s_lshl_b32 s7, s67, 10")
    k("s_lshl_b32 s71, s66, 9")
    k("s_add_u32 s7, s7, s71")
    k("v_lshl_add_u32 v23, v0, 3, s7")
    k(f"ds_write_b64 v23, v[104:105] offset:{L_RED}")
    k("s_lshl_b32 s7, s3, 7")
    k("v_lshl_add_u32 v23, v28, 5, s7")
    k("s_waitcnt lgkmcnt(0)")
    k("s_barrier")
    for cg in range(4):
        k(f"ds_read_b128 v[{64 + 8 * cg}:{67 + 8 * cg}], v23 offset:{L_RED + cg * 1024}")
        k(f"ds_read_b128 v[{68 + 8 * cg}:{71 + 8 * cg}], v23 offset:{L_RED + cg * 1024 + 16}")
    k("s_waitcnt lgkmcnt(0)")
    for i in range(8):
        k(f"v_add_f32 v{64 + i}, v{64 + i}, v{72 + i}")
        k(f"v_add_f32 v{80 + i}, v{80 + i}, v{88 + i}")
    for i in range(8):
        k(f"v_add_f32 v{64 + i}, v{64 + i}, v{80 + i}")
    pack8(64, 16)
    for i in range(8):
        k(f"v_mfma_f32_16x16x32_bf16 v[{64 + 4 * i}:{67 + 4 * i}], v[16:19], v[{32 + 4 * i}:{35 + 4 * i}], 0")
    k("s_lshl_b32 s7, s3, 9")
    k("v_lshl_add_u32 v23, v0, 5, s7")
    k(f"v_add_u32 v23, {L_RED2}, v23")
    k("s_mov_b64 exec, 0xffff")
    for i in range(0, 8, 2):
        k(f"ds_write2_b32 v23, v{64 + 4 * i}, v{68 + 4 * i} offset0:{i} offset1:{i + 1}")
    k("s_mov_b64 exec, -1")
    k("s_waitcnt lgkmcnt(0)")
    k("s_barrier")
    k("s_cmp_ge_u32 s3, 2")
    k("s_cbranch_scc1 L_end")
    k("s_lshl_b32 s7, s3, 8")
    k("v_lshl_add_u32 v23, v0, 2, s7")
    for w in range(8):
        k(f"ds_read_b32 v{64 + w}, v23 offset:{L_RED2 + w * 512}")
    k("s_lshl_b32 s7, s81, 10")
    k(f"s_add_u32 s7, s7, {WS_E2}")
    k("v_lshl_add_u32 v23, v23, 1, s7")
    k("v_mov_b32 v73, s6")
    k("s_waitcnt lgkmcnt(0)")
    k("v_add_f32 v64, v64, v65")
    k("v_add_f32 v66, v66, v67")
    k("v_add_f32 v68, v68, v69")
    k("v_add_f32 v70, v70, v71")
    k("v_add_f32 v64, v64, v66")
    k("v_add_f32 v68, v68, v70")
    k("v_add_f32 v72, v64, v68")
    k("global_store_dwordx2 v23, v[72:73], s[8:9] sc1")
    stamp(6)
    k("s_endpgm")

    H2 = L_RED + 4096
    T3R = L_RED + 12288
    H1 = L_RED + 14336
    k.label("L_MLP")
    k("s_lshl_b32 s7, s3, 13")
    k(f"s_add_u32 s7, s7, {L_W}")
    k("v_add_u32 v24, s7, v1")
    for e in range(8):
        k(f"ds_read_b128 v[{64 + 4 * e}:{67 + 4 * e}], v24 offset:{e * 1024}")
    k("v_add_u32 v24, 0x10000, v24")
    for e in range(8):
        k(f"ds_read_b128 v[{96 + 4 * e}:{99 + 4 * e}], v24 offset:{e * 1024}")
    k("s_waitcnt lgkmcnt(8)")
    for i in range(8):
        perm_frag(32 + 4 * i, 64, i)
    k("s_waitcnt lgkmcnt(0)")
    for i in range(8):
        perm_frag(64 + 4 * i, 96, i)
    for i in range(32):
        k(f"v_accvgpr_write_b32 a{i}, v{64 + i}")
    k("v_lshlrev_b32 v24, 5, v0")
    k(f"v_add_u32 v24, {WS_MOD + 1024 * 4}, v24")
    k("v_add_u32 v25, 0x1000, v24")
    k("s_lshl_b32 s7, s81, 7")
    k(f"s_add_u32 s7, s7, {WS_MOD + 2560 * 4}")
    k("v_lshl_add_u32 v26, v29, 3, s7")
    k("global_load_dwordx4 v[88:91], v1, s[16:17]")
    top = poll_begin()
    k("global_load_dwordx4 v[64:67], v24, s[8:9] sc1")
    k("global_load_dwordx4 v[68:71], v24, s[8:9] offset:16 sc1")
    k("global_load_dwordx4 v[72:75], v24, s[8:9] offset:2048 sc1")
    k("global_load_dwordx4 v[76:79], v24, s[8:9] offset:2064 sc1")
    k("global_load_dwordx4 v[80:83], v25, s[8:9] sc1")
    k("global_load_dwordx4 v[84:87], v25, s[8:9] offset:16 sc1")
    k("v_min_u32 v27, 0x12ff8, v26")
    k("global_load_dwordx2 v[92:93], v27, s[8:9] sc1")
    k("s_waitcnt vmcnt(0)")
    check_tags([f"v{65 + 2 * i}" for i in range(12)] + ["v93"], "v94", "v95", top)
    unpack8(88, 96)
    unpack_gr([64, 66, 68, 70], 104)
    unpack_gr([72, 74, 76, 78], 112)
    unpack_gr([80, 82, 84, 86], 120)
    for i in range(8):
        k(f"v_add_f32 v{120 + i}, 1.0, v{120 + i}")
    k("v_mov_b32 v21, v92")
    k("s_lshr_b32 s66, s3, 2")
    k("s_and_b32 s67, s3, 3")
    k("s_lshl_b32 s7, s66, 15")
    k("s_lshl_b32 s68, s67, 10")
    k("s_add_u32 s7, s7, s68")
    k(f"s_add_u32 s7, s7, {WS_E2}")
    k("v_add_u32 v24, s7, v1")
    k("v_add_u32 v25, 0x2000, v24")
    k("v_add_u32 v26, 0x4000, v24")
    k("v_add_u32 v27, 0x6000, v24")
    k("s_barrier")
    top = poll_begin()
    for kk in range(8):
        a = ["v24", "v25", "v26", "v27"][kk >> 1]
        if kk & 1:
            k(f"v_add_u32 v23, 0x1000, {a}")
            k(f"global_load_dwordx4 v[{64 + 4 * kk}:{67 + 4 * kk}], v23, s[8:9] sc1")
        else:
            k(f"global_load_dwordx4 v[{64 + 4 * kk}:{67 + 4 * kk}], {a}, s[8:9] sc1")
    k("s_waitcnt vmcnt(0)")
    check_tags([f"v{65 + 2 * i}" for i in range(16)], "v22", "v23", top)
    stamp(5)
    for kk in range(1, 8):
        k(f"v_add_f32 v64, v64, v{64 + 4 * kk}")
        k(f"v_add_f32 v66, v66, v{66 + 4 * kk}")
    k("v_mov_b32 v65, v66")
    k("s_lshl_b32 s7, s66, 11")
    k("s_lshl_b32 s68, s67, 9")
    k("s_add_u32 s7, s7, s68")
    k("v_lshl_add_u32 v23, v0, 3, s7")
    k(f"ds_write_b64 v23, v[64:65] offset:{L_RED}")
    k("v_lshlrev_b32 v23, 5, v0")
    k("s_waitcnt lgkmcnt(0)")
    k("s_barrier")
    k(f"ds_read_b128 v[64:67], v23 offset:{L_RED}")
    k(f"ds_read_b128 v[68:71], v23 offset:{L_RED + 16}")
    k(f"ds_read_b128 v[72:75], v23 offset:{L_RED + 2048}")
    k(f"ds_read_b128 v[76:79], v23 offset:{L_RED + 2064}")
    k("s_waitcnt lgkmcnt(0)")
    for i in range(8):
        k(f"v_add_f32 v{64 + i}, v{64 + i}, v{72 + i}")
    for i in range(8):
        k(f"v_fma_f32 v{64 + i}, v{104 + i}, v{64 + i}, v{96 + i}")
    k("s_cmp_lg_u32 s3, 0")
    k("s_cbranch_scc1 L_MLP_nox2")
    k(f"ds_write_b128 v23, v[64:67] offset:{L_X2}")
    k(f"ds_write_b128 v23, v[68:71] offset:{L_X2 + 16}")
    k.label("L_MLP_nox2")
    k("v_add_f32 v80, v64, v65")
    for i in range(2, 8):
        k(f"v_add_f32 v80, v80, v{64 + i}")
    allreduce("v80", "v81", "v_add_f32")
    k(f"v_mul_f32 v80, 0x{f2u(1.0 / 512):08x}, v80")
    for i in range(8):
        k(f"v_sub_f32 v{72 + i}, v{64 + i}, v80")
    k("v_mul_f32 v82, v72, v72")
    for i in range(1, 8):
        k(f"v_fmac_f32 v82, v{72 + i}, v{72 + i}")
    allreduce("v82", "v81", "v_add_f32")
    k(f"v_mov_b32 v83, 0x{f2u(1e-5):08x}")
    k(f"v_fmac_f32 v83, 0x{f2u(1.0 / 512):08x}, v82")
    k("v_rsq_f32 v83, v83")
    for i in range(8):
        k(f"v_mul_f32 v{72 + i}, v{72 + i}, v83")
    for i in range(8):
        k(f"v_fma_f32 v{72 + i}, v{72 + i}, v{120 + i}, v{112 + i}")
    pack8(72, 84)
    k("s_lshl_b32 s7, s3, 10")
    k("v_add_u32 v23, s7, v1")
    k(f"ds_write_b128 v23, v[84:87] offset:{H2}")
    k("v_and_b32 v22, 1, v0")
    k("v_lshlrev_b32 v22, 2, v22")
    k("v_add_u32 v22, v22, v28")
    k("s_mul_i32 s7, s3, 1152")
    k("v_lshl_add_u32 v22, v22, 4, s7")
    k("s_waitcnt lgkmcnt(0)")
    k(f"ds_read_b128 v[16:19], v22 offset:{H2}")
    k("s_waitcnt lgkmcnt(0)")
    for i in range(8):
        k(f"v_mfma_f32_16x16x32_bf16 v[{64 + 4 * i}:{67 + 4 * i}], v[16:19], v[{32 + 4 * i}:{35 + 4 * i}], 0")
    for i in range(8):
        k(f"v_add_f32_dpp v{96 + i}, v{64 + 4 * i + 1}, v{64 + 4 * i} row_ror:8 row_mask:0xf bank_mask:0xf")
    k("s_lshl_b32 s7, s3, 8")
    k("v_lshl_add_u32 v23, v0, 5, s7")
    k("s_mov_b64 exec, 0xff")
    k(f"ds_write_b128 v23, v[96:99] offset:{T3R}")
    k(f"ds_write_b128 v23, v[100:103] offset:{T3R + 16}")
    k("s_mov_b64 exec, -1")
    k("v_lshlrev_b32 v23, 2, v0")
    k("s_waitcnt lgkmcnt(0)")
    k("s_barrier")
    for w in range(8):
        k(f"ds_read_b32 v{64 + w}, v23 offset:{T3R + w * 256}")
    k("s_waitcnt lgkmcnt(0)")
    k("v_add_f32 v64, v64, v65")
    k("v_add_f32 v66, v66, v67")
    k("v_add_f32 v68, v68, v69")
    k("v_add_f32 v70, v70, v71")
    k("v_add_f32 v64, v64, v66")
    k("v_add_f32 v68, v68, v70")
    k("v_add_f32 v64, v64, v68")
    silu_inplace([64], [65])
    k("v_cvt_pk_bf16_f32 v64, v64, v64")
    k("s_lshl_b32 s7, s3, 7")
    k("v_lshl_add_u32 v23, v0, 1, s7")
    k(f"ds_write_b16 v23, v64 offset:{H1}")
    k("v_and_b32 v22, 1, v0")
    k("v_lshlrev_b32 v22, 2, v22")
    k("v_add_u32 v22, v22, v28")
    k("v_lshl_add_u32 v22, v22, 4, s7")
    k("s_waitcnt lgkmcnt(0)")
    k(f"ds_read_b128 v[16:19], v22 offset:{H1}")
    for i in range(8):
        k(f"v_mov_b32 v{97 + 2 * i}, s6")
    k("s_lshl_b32 s7, s81, 12")
    k("s_lshl_b32 s68, s3, 9")
    k("s_add_u32 s7, s7, s68")
    k(f"s_add_u32 s7, s7, {WS_E3}")
    k("v_lshl_add_u32 v23, v0, 6, s7")
    k("s_waitcnt lgkmcnt(0)")
    for i in range(8):
        k(f"v_mfma_f32_16x16x32_bf16 v[{64 + 4 * i}:{67 + 4 * i}], v[16:19], a[{4 * i}:{4 * i + 3}], 0")
    for i in range(8):
        k(f"v_add_f32_dpp v{96 + 2 * i}, v{64 + 4 * i + 1}, v{64 + 4 * i} row_ror:8 row_mask:0xf bank_mask:0xf")
    k("s_mov_b64 exec, 0xff")
    for i in range(4):
        k(f"global_store_dwordx4 v23, v[{96 + 4 * i}:{99 + 4 * i}], s[8:9] offset:{16 * i} sc1")
    k("s_mov_b64 exec, -1")
    stamp(6)
    k("s_cmp_lg_u32 s3, 0")
    k("s_cbranch_scc1 L_end")
    k("s_cmp_ge_u32 s81, 16")
    k("s_cbranch_scc1 L_end")
    k("s_lshl_b32 s7, s81, 7")
    k("v_lshl_add_u32 v22, v29, 3, s7")
    k(f"ds_read_b64 v[112:113], v22 offset:{L_X2}")
    k("v_lshlrev_b32 v24, 1, v22")
    k("v_lshl_add_u32 v24, v28, 12, v24")
    k(f"v_add_u32 v24, {WS_E3}, v24")
    top = poll_begin()
    for kk in range(7):
        k(f"v_add_u32 v23, {kk * 16384}, v24")
        k(f"global_load_dwordx4 v[{64 + 4 * kk}:{67 + 4 * kk}], v23, s[8:9] sc1")
    k("s_waitcnt vmcnt(0)")
    check_tags([f"v{65 + 2 * i}" for i in range(14)], "v100", "v101", top)
    stamp(7)
    for kk in range(1, 7):
        k(f"v_add_f32 v64, v64, v{64 + 4 * kk}")
        k(f"v_add_f32 v66, v66, v{66 + 4 * kk}")
    allreduce("v64", "v65", "v_add_f32", steps=("x16", "x32"))
    allreduce("v66", "v65", "v_add_f32", steps=("x16", "x32"))
    k("v_lshlrev_b32 v68, 16, v21")
    k("v_and_b32 v69, 0xffff0000, v21")
    k("s_waitcnt lgkmcnt(0)")
    k("v_fma_f32 v64, v68, v64, v112")
    k("v_fma_f32 v66, v69, v66, v113")
    k("v_cvt_pk_bf16_f32 v64, v64, v66")
    k("v_lshrrev_b32 v22, 1, v22")
    k("s_mov_b64 exec, 0xffff")
    k("global_store_dword v22, v64, s[36:37]")
    k("s_mov_b64 exec, -1")
    k("s_cmp_lg_u32 s81, 0")
    k("s_cbranch_scc1 L_end2")
    k("v_mov_b32 v22, 0")
    k("v_mov_b32 v23, s6")
    k("s_mov_b64 exec, 1")
    k("global_store_dword v22, v23, s[8:9]")
    k("s_mov_b64 exec, -1")
    k.label("L_end2")
    stamp(8)
    k("s_endpgm")

    k.raw('.section .rodata,"a"')
    k.raw(".p2align 6")
    k.raw(f".amdhsa_kernel {NAME}_kernel")
    k.raw("  .amdhsa_next_free_vgpr 224")
    k.raw("  .amdhsa_next_free_sgpr 100")
    k.raw("  .amdhsa_accum_offset 128")
    k.raw("  .amdhsa_group_segment_fixed_size 0")
    k.raw("  .amdhsa_kernarg_size 104")
    k.raw("  .amdhsa_user_sgpr_count 2")
    k.raw("  .amdhsa_user_sgpr_kernarg_segment_ptr 1")
    k.raw("  .amdhsa_system_sgpr_workgroup_id_x 1")
    k.raw(".end_amdhsa_kernel")
    return k.text()


if __name__ == "__main__":
    out = sys.argv[1] if len(sys.argv) > 1 else f"cdna_kernels/{NAME}.s"
    st = "--stamps" in sys.argv
    kw = {}
    for a in sys.argv[2:]:
        if "=" in a:
            kk, vv = a.split("=")
            kw[kk] = int(vv)
    open(out, "w").write(gen(stamps=st, **kw))
    print("wrote", out)
```

```python
import math
import struct
import sys

sys.path.insert(0, "code")
from asmdsl import K

NAME = "adaLN_cond__gqa_block_cached__dense_activation_silu__decode"


def f2u(x):
    return struct.unpack("<I", struct.pack("<f", x))[0]


WS_EPOCH = 0x0
WS_CNT = 0x1000
WS_MOD = 0x10000
WS_Q = 0x14000
WS_ML = 0x18000
WS_O1 = 0x20000
WS_E2 = 0x120000
WS_E3 = 0x130000
WS_STAMP = 0x200000
WS_LOG = 0x300000

L_SCR = 0
L_QF = L_SCR
L_RED = L_SCR + 1024
L_MM = L_RED + 16384
L_LL = L_MM + 128
L_RED2 = L_MM + 256
L_X2 = L_RED2
L_W = 22528
assert L_RED2 + 4096 <= L_W
LDS_TOTAL = L_W + 131072

TILES = 2048
POLL_LIMIT = 200000
L_FLAG = L_RED2 + 4096
assert L_FLAG + 4 <= L_W

SEL_LO, SEL_HI = "s14", "s15"


def gen(stamps=False, ND=4, PW=4, DBG=0):
    NSTATWG = 16 + ND
    POOL0 = 32 * NSTATWG
    SUBPOOL = (TILES - POOL0) // 4
    k = K()
    uid = [0]

    def lab(p):
        uid[0] += 1
        return f"L_{p}_{uid[0]}"

    def stamp(idx):
        if DBG == 2:
            sk = lab("nost")
            k("s_lshl_b32 s92, s2, 3")
            k("s_add_u32 s92, s92, s3")
            k(f"s_cmp_lg_u32 s92, {22 * 8}")
            k(f"s_cbranch_scc1 {sk}")
            k("s_memrealtime s[92:93]")
            k("s_waitcnt lgkmcnt(0)")
            k("v_mov_b32 v30, s92")
            k("v_mov_b32 v31, 0")
            k("s_mov_b64 exec, 1")
            k(f"global_store_dword v31, v30, s[38:39] offset:{idx * 4}")
            k("s_mov_b64 exec, -1")
            k.label(sk)
            return
        if DBG:
            k("s_memrealtime s[92:93]")
            k("s_waitcnt lgkmcnt(0)")
            k("v_mov_b32 v30, s92")
            k("v_mov_b32 v31, 0")
            k("s_mov_b64 exec, 1")
            k(f"global_atomic_umax v31, v30, s[38:39] offset:{(idx + 1) * 4}")
            if idx == 0:
                k("v_not_b32 v30, v30")
                k(f"global_atomic_umax v31, v30, s[38:39] offset:0")
            k("s_mov_b64 exec, -1")
            return
        if not stamps:
            return
        k("s_memrealtime s[92:93]")
        k("s_waitcnt lgkmcnt(0)")
        k("v_mov_b32 v30, s92")
        k(f"v_mov_b32 v31, s94")
        k("s_mov_b64 exec, 1")
        k(f"global_store_dword v31, v30, s[8:9] offset:{idx * 4}")
        k("s_mov_b64 exec, -1")

    def allreduce(v, t, op, steps=("r1", "r2", "r4", "r8", "x16", "x32")):
        for s in steps:
            if s[0] == "r":
                k(f"{op}_dpp {v}, {v}, {v} row_ror:{s[1:]} row_mask:0xf bank_mask:0xf")
            else:
                k(f"v_mov_b32 {t}, {v}")
                k(f"v_permlane{s[1:]}_swap_b32 {v}, {t}")
                k(f"{op} {v}, {v}, {t}")

    def check_tags(tags, tmn, tmx, retry):
        def chain(op3, op2, dst):
            rest = list(tags)
            if len(rest) >= 3:
                k(f"{op3} {dst}, {rest[0]}, {rest[1]}, {rest[2]}")
                rest = rest[3:]
            else:
                k(f"{op2} {dst}, {rest[0]}, {rest[1]}")
                rest = rest[2:]
            while len(rest) >= 2:
                k(f"{op3} {dst}, {dst}, {rest[0]}, {rest[1]}")
                rest = rest[2:]
            if rest:
                k(f"{op2} {dst}, {dst}, {rest[0]}")
        if len(tags) == 1:
            k(f"v_cmp_ne_u32 vcc, s6, {tags[0]}")
            k("s_nop 0")
            k("s_or_b64 s[12:13], vcc, vcc")
        else:
            chain("v_min3_u32", "v_min_u32", tmn)
            chain("v_max3_u32", "v_max_u32", tmx)
            k(f"v_cmp_ne_u32 vcc, s6, {tmn}")
            k(f"v_cmp_ne_u32 s[12:13], s6, {tmx}")
            k("s_or_b64 s[12:13], s[12:13], vcc")
        k(f"s_cbranch_scc1 {retry}")

    def poll_begin():
        top = lab("poll")
        go = lab("go")
        k("s_mov_b32 s7, 0")
        k(f"s_branch {go}")
        k.label(top)
        k("s_add_u32 s7, s7, 1")
        k(f"s_cmp_ge_u32 s7, {POLL_LIMIT}")
        k("s_cbranch_scc1 L_end")
        k.label(go)
        return top

    def perm_frag(dst, src, i):
        sel = SEL_HI if (i & 1) else SEL_LO
        for jp in range(4):
            lo = src + 4 * (2 * jp) + (i >> 1)
            hi = src + 4 * (2 * jp + 1) + (i >> 1)
            k(f"v_perm_b32 v{dst + jp}, v{hi}, v{lo}, {sel}")

    def gemv_tile(src, afrag, dreg, btmp):
        sets = [btmp, btmp + 4, btmp + 8]
        perm_frag(sets[0], src, 0)
        perm_frag(sets[1], src, 1)
        for i in range(8):
            if i + 2 < 8:
                perm_frag(sets[(i + 2) % 3], src, i + 2)
            b = sets[i % 3]
            k(f"v_mfma_f32_16x16x32_bf16 v[{dreg + 4 * i}:{dreg + 4 * i + 3}], v[{afrag}:{afrag + 3}], v[{b}:{b + 3}], 0")

    def unpack8(src, dst):
        for i in range(4):
            k(f"v_lshlrev_b32 v{dst + 2 * i}, 16, v{src + i}")
            k(f"v_and_b32 v{dst + 2 * i + 1}, 0xffff0000, v{src + i}")

    def unpack_gr(srcs, dst):
        for i, s in enumerate(srcs):
            k(f"v_lshlrev_b32 v{dst + 2 * i}, 16, v{s}")
            k(f"v_and_b32 v{dst + 2 * i + 1}, 0xffff0000, v{s}")

    def silu_inplace(regs, tmp):
        for r, t in zip(regs, tmp):
            k(f"v_mul_f32 v{t}, s58, v{r}")
        for r, t in zip(regs, tmp):
            k(f"v_exp_f32 v{t}, v{t}")
        for r, t in zip(regs, tmp):
            k(f"v_add_f32 v{t}, 1.0, v{t}")
        for r, t in zip(regs, tmp):
            k(f"v_rcp_f32 v{t}, v{t}")
        for r, t in zip(regs, tmp):
            k(f"v_mul_f32 v{r}, v{r}, v{t}")

    def pack8(src, dst):
        for i in range(4):
            k(f"v_cvt_pk_bf16_f32 v{dst + i}, v{src + 2 * i}, v{src + 2 * i + 1}")

    k.raw(f"; @launch grid=(256,1,1) block=(512,1,1) lds={LDS_TOTAL}")
    k.raw('.amdgcn_target "amdgcn-amd-amdhsa--gfx950"')
    k.raw(".text")
    k.raw(f".globl {NAME}_kernel")
    k.raw(".p2align 8")
    k.raw(f".type {NAME}_kernel,@function")
    k.label(f"{NAME}_kernel")
    k("s_cmp_ge_u32 s2, 256")
    k("s_cbranch_scc1 L_end")
    k("s_load_dwordx16 s[16:31], s[0:1], 0")
    k("s_load_dwordx8 s[32:39], s[0:1], 64")
    k("s_load_dwordx2 s[8:9], s[0:1], 96")
    k("v_lshrrev_b32 v1, 6, v0")
    k("v_and_b32 v0, 63, v0")
    k("v_readfirstlane_b32 s3, v1")
    k("s_lshr_b32 s4, s2, 5")
    k("s_and_b32 s5, s2, 31")
    k("s_mov_b32 s14, 0x05040100")
    k("s_mov_b32 s15, 0x07060302")
    k(f"s_mov_b32 s56, 0x{f2u((128 ** -0.5) * math.log2(math.e)):08x}")
    k(f"s_mov_b32 s57, 0x{f2u(8.0):08x}")
    k(f"s_mov_b32 s58, 0x{f2u(-math.log2(math.e)):08x}")
    k("v_lshlrev_b32 v1, 4, v0")
    k("v_add_u32 v2, 0x1000, v1")
    k("v_bfe_u32 v3, v0, 2, 2")
    k("v_lshlrev_b32 v3, 8, v3")
    k("v_lshrrev_b32 v28, 4, v0")
    k("v_lshl_add_u32 v3, v28, 6, v3")
    k("v_and_b32 v29, 3, v0")
    k("v_lshl_add_u32 v3, v29, 4, v3")
    k("v_add_u32 v4, 0x1000, v3")
    k("v_and_b32 v29, 15, v0")
    k("v_bfe_u32 v26, v0, 2, 2")
    k("v_mov_b32 v5, 0")
    k("v_mov_b32 v6, 0")
    k("v_mov_b32 v24, 0x0000ffff")
    k("v_mov_b32 v25, 0xffff0000")
    k("v_cmp_eq_u32 vcc, 0, v26")
    k("v_cndmask_b32 v5, v5, v24, vcc")
    k("v_cmp_eq_u32 vcc, 1, v26")
    k("v_cndmask_b32 v5, v5, v25, vcc")
    k("v_cmp_eq_u32 vcc, 2, v26")
    k("v_cndmask_b32 v6, v6, v24, vcc")
    k("v_cmp_eq_u32 vcc, 3, v26")
    k("v_cndmask_b32 v6, v6, v25, vcc")
    k("v_mov_b32 v7, 0xf149f2ca")
    k("v_mov_b32 v8, 0")
    k("v_mov_b32 v9, 0")
    k("v_mov_b32 v10, 0")
    k("v_mov_b32 v11, 1")
    k(f"ds_write_b32 v10, v10 offset:{L_FLAG}")
    for i in range(32):
        k(f"v_accvgpr_write_b32 a{64 + i}, 0")
    k("v_lshrrev_b32 v27, 3, v29")
    k("v_lshlrev_b32 v27, 5, v27")
    k("v_lshl_add_u32 v27, v28, 3, v27")
    k("v_and_b32 v26, 7, v29")
    k("v_lshlrev_b32 v26, 4, v26")
    k("v_and_b32 v25, 1, v29")
    k("v_lshlrev_b32 v25, 5, v25")
    k("v_lshl_add_u32 v25, v28, 3, v25")
    k("s_waitcnt lgkmcnt(0)")
    k("s_load_dword s6, s[8:9], 0")
    k("s_lshl_b32 s7, s4, 24")
    k("s_add_u32 s40, s18, s7")
    k("s_addc_u32 s41, s19, 0")
    k("s_mov_b32 s42, 0x1000000")
    k("s_mov_b32 s43, 0x20000")
    k("s_add_u32 s44, s20, s7")
    k("s_addc_u32 s45, s21, 0")
    k("s_mov_b32 s46, 0x1000000")
    k("s_mov_b32 s47, 0x20000")
    if stamps:
        k("s_lshl_b32 s94, s2, 3")
        k("s_add_u32 s94, s94, s3")
        k("s_lshl_b32 s94, s94, 6")
        k("s_lshl_b32 s95, s94, 3")
        k(f"s_add_u32 s95, s95, {WS_LOG}")
        k(f"s_add_u32 s94, s94, {WS_STAMP}")
    stamp(0)
    k("s_mov_b32 s80, 0")
    k("s_mov_b32 s81, 0")
    k("s_cmp_lt_u32 s5, 6")
    k("s_cbranch_scc1 L_roleA")
    k("s_cmp_lt_u32 s5, 14")
    k("s_cbranch_scc1 L_roleB")
    k("s_cmp_lt_u32 s5, 22")
    k("s_cbranch_scc1 L_roleT2")
    k("s_and_b32 s7, s4, 1")
    k("s_sub_u32 s7, 26, s7")
    k("s_cmp_lt_u32 s5, s7")
    k("s_cbranch_scc1 L_roleMLP")
    k("s_branch L_common0")

    def stage_finish(ws_off):
        for i in range(8):
            k(f"v_add_f32_dpp v{104 + i}, v{32 + 4 * i + 1}, v{32 + 4 * i} row_ror:8 row_mask:0xf bank_mask:0xf")
        k("v_lshlrev_b32 v112, 5, v0")
        k("s_lshl_b32 s7, s3, 8")
        k(f"s_add_u32 s7, s7, {L_RED}")
        k("v_add_u32 v112, s7, v112")
        k("s_mov_b64 exec, 0xff")
        k("ds_write_b128 v112, v[104:107]")
        k("ds_write_b128 v112, v[108:111] offset:16")
        k("s_mov_b64 exec, -1")
        k("s_waitcnt lgkmcnt(0)")
        k("s_barrier")
        k("s_cmp_lg_u32 s3, 0")
        k("s_cbranch_scc1 L_common")
        k("v_lshlrev_b32 v112, 3, v0")
        for w in range(8):
            k(f"ds_read_b64 v[{32 + 2 * w}:{33 + 2 * w}], v112 offset:{L_RED + w * 256}")
        k("s_lshl_b32 s7, s81, 8")
        k(f"s_add_u32 s7, s7, {ws_off}")
        k("v_add_u32 v113, s7, v112")
        k("s_waitcnt lgkmcnt(0)")
        for w in range(1, 8):
            k(f"v_add_f32 v32, v32, v{32 + 2 * w}")
            k(f"v_add_f32 v33, v33, v{33 + 2 * w}")
        k("v_cvt_pk_bf16_f32 v34, v32, v33")
        k("v_mov_b32 v35, s6")
        k("s_waitcnt vmcnt(0)")
        k("s_mov_b64 exec, 0xffffffff")
        k("global_store_dwordx2 v113, v[34:35], s[8:9] sc1")
        k("s_mov_b64 exec, -1")
        stamp(1)
        k("s_branch L_common")

    k.label("L_roleA")
    k("s_mov_b32 s80, 1")
    k("s_mul_i32 s81, s4, 6")
    k("s_add_u32 s81, s81, s5")
    k("s_mov_b32 s48, s34")
    k("s_mov_b32 s49, s35")
    k(f"s_mov_b32 s50, {512 * 6144}")
    k("s_mov_b32 s51, 0x20000")
    k("s_movk_i32 s7, 6144")
    k("v_mul_lo_u32 v112, v27, s7")
    k("v_add_u32 v112, v112, v26")
    k(f"s_mul_i32 s66, s3, {64 * 6144}")
    k("s_lshl_b32 s7, s81, 7")
    k("s_add_u32 s66, s66, s7")
    k("s_lshl_b32 s7, s3, 6")
    k("v_add_u32 v113, s7, v25")
    k("v_lshlrev_b32 v113, 1, v113")
    k("global_load_dwordx4 v[96:99], v113, s[32:33]")
    for e in range(8):
        k(f"buffer_load_dwordx4 v[{64 + 4 * e}:{67 + 4 * e}], v112, s[48:51], s66 offen nt")
        if e < 7:
            k("s_add_u32 s66, s66, 6144")
    k("s_or_b32 s7, s81, s3")
    k("s_cmp_lg_u32 s7, 0")
    k("s_cbranch_scc1 L_A_nozero")
    k("v_lshlrev_b32 v114, 8, v0")
    k(f"v_add_u32 v114, {WS_CNT}, v114")
    k("s_mov_b64 exec, 0xffffffff")
    k("global_store_dword v114, v10, s[8:9] sc1")
    k("s_mov_b64 exec, -1")
    k("s_waitcnt vmcnt(9)")
    k("s_branch L_A_go")
    k.label("L_A_nozero")
    k("s_waitcnt vmcnt(8)")
    k.label("L_A_go")
    unpack8(96, 104)
    silu_inplace(list(range(104, 112)), list(range(112, 120)))
    pack8(104, 16)
    k("s_waitcnt vmcnt(0) lgkmcnt(0)")
    k("s_add_u32 s6, s6, 1")
    gemv_tile(64, 16, 32, 96)
    stage_finish(WS_MOD)

    k.label("L_roleB")
    k("s_mov_b32 s80, 2")
    k("s_lshl_b32 s81, s4, 3")
    k("s_add_u32 s81, s81, s5")
    k("s_sub_u32 s81, s81, 6")
    k("s_mov_b32 s48, s22")
    k("s_mov_b32 s49, s23")
    k(f"s_mov_b32 s50, {512 * 8192}")
    k("s_mov_b32 s51, 0x20000")
    k("v_lshlrev_b32 v112, 13, v27")
    k("v_add_u32 v112, v112, v26")
    k("s_lshl_b32 s66, s3, 19")
    k("s_lshl_b32 s7, s81, 7")
    k("s_add_u32 s66, s66, s7")
    k("s_lshl_b32 s7, s3, 6")
    k("v_add_u32 v113, s7, v25")
    k("v_lshlrev_b32 v114, 1, v113")
    k("global_load_dwordx4 v[96:99], v1, s[16:17]")
    k("global_load_dwordx4 v[100:103], v114, s[16:17]")
    for e in range(8):
        k(f"buffer_load_dwordx4 v[{64 + 4 * e}:{67 + 4 * e}], v112, s[48:51], s66 offen nt")
        if e < 7:
            k("s_add_u32 s66, s66, 8192")
    k("v_lshlrev_b32 v113, 2, v113")
    k(f"v_add_u32 v113, {WS_MOD}, v113")
    k("s_waitcnt vmcnt(8)")
    unpack8(96, 104)
    k("v_add_f32 v120, v104, v105")
    for i in range(2, 8):
        k(f"v_add_f32 v120, v120, v{104 + i}")
    allreduce("v120", "v121", "v_add_f32")
    k(f"v_mul_f32 v120, 0x{f2u(1.0 / 512):08x}, v120")
    for i in range(8):
        k(f"v_sub_f32 v{104 + i}, v{104 + i}, v120")
    k("v_mul_f32 v122, v104, v104")
    for i in range(1, 8):
        k(f"v_fmac_f32 v122, v{104 + i}, v{104 + i}")
    allreduce("v122", "v121", "v_add_f32")
    k(f"v_mov_b32 v123, 0x{f2u(1e-5):08x}")
    k(f"v_fmac_f32 v123, 0x{f2u(1.0 / 512):08x}, v122")
    k("v_rsq_f32 v123, v123")
    unpack8(100, 104)
    for i in range(8):
        k(f"v_sub_f32 v{104 + i}, v{104 + i}, v120")
    for i in range(8):
        k(f"v_mul_f32 v{104 + i}, v{104 + i}, v123")
    k("s_waitcnt lgkmcnt(0)")
    k("s_add_u32 s6, s6, 1")
    k("v_and_b32 v114, 1, v0")
    k("v_lshlrev_b32 v114, 11, v114")
    k("s_lshl_b32 s66, s3, 8")
    k(f"s_add_u32 s66, s66, {WS_MOD}")
    k("v_add_u32 v114, s66, v114")
    top = poll_begin()
    k("s_mov_b64 exec, 3")
    k("global_load_dwordx2 v[32:33], v114, s[8:9] sc1")
    k("s_waitcnt vmcnt(0)")
    k("v_cmp_ne_u32 vcc, s6, v33")
    k("s_mov_b64 exec, -1")
    k(f"s_cbranch_vccnz {top}")
    k("global_load_dwordx4 v[32:35], v113, s[8:9] sc1")
    k("global_load_dwordx4 v[36:39], v113, s[8:9] offset:16 sc1")
    k("global_load_dwordx4 v[40:43], v113, s[8:9] offset:2048 sc1")
    k("global_load_dwordx4 v[44:47], v113, s[8:9] offset:2064 sc1")
    k("s_waitcnt vmcnt(0)")
    check_tags([f"v{33 + 2 * i}" for i in range(8)], "v48", "v49", top)
    unpack_gr([32, 34, 36, 38], 112)
    unpack_gr([40, 42, 44, 46], 120)
    for i in range(8):
        k(f"v_add_f32 v{120 + i}, 1.0, v{120 + i}")
    for i in range(8):
        k(f"v_fma_f32 v{104 + i}, v{104 + i}, v{120 + i}, v{112 + i}")
    pack8(104, 16)
    gemv_tile(64, 16, 32, 96)
    stage_finish(WS_Q)

    k.label("L_roleT2")
    k("s_mov_b32 s80, 3")
    k("s_lshl_b32 s81, s4, 3")
    k("s_add_u32 s81, s81, s5")
    k("s_sub_u32 s81, s81, 14")
    k("s_mov_b32 s48, s24")
    k("s_mov_b32 s49, s25")
    k(f"s_mov_b32 s50, {4096 * 1024}")
    k("s_mov_b32 s51, 0x20000")
    k("v_lshlrev_b32 v112, 13, v28")
    k("v_lshl_add_u32 v112, v29, 4, v112")
    k("s_lshr_b32 s66, s81, 2")
    k("s_lshl_b32 s66, s66, 18")
    k("s_lshl_b32 s7, s3, 15")
    k("s_add_u32 s66, s66, s7")
    k("s_and_b32 s7, s81, 3")
    k("s_lshl_b32 s7, s7, 8")
    k("s_add_u32 s66, s66, s7")
    k("s_lshl_b32 s67, s3, 13")
    k(f"s_add_u32 s67, s67, {L_W}")
    for e in range(8):
        k("s_mov_b32 m0, s67")
        if e >= PW:
            k(f"s_waitcnt vmcnt({PW - 1})")
        k(f"buffer_load_dwordx4 v112, s[48:51], s66 offen nt lds")
        if e < 7:
            k("s_add_u32 s66, s66, 1024")
            k("s_add_u32 s67, s67, 1024")
    k("s_branch L_common0")

    k.label("L_roleMLP")
    k("s_mov_b32 s80, 4")
    k("s_lshr_b32 s81, s4, 1")
    k("s_mul_i32 s81, s81, 7")
    k("s_and_b32 s7, s4, 1")
    k("s_lshl_b32 s7, s7, 2")
    k("s_add_u32 s81, s81, s7")
    k("s_add_u32 s81, s81, s5")
    k("s_sub_u32 s81, s81, 22")
    k("s_mov_b32 s48, s28")
    k("s_mov_b32 s49, s29")
    k(f"s_mov_b32 s50, {512 * 3584}")
    k("s_mov_b32 s51, 0x20000")
    k("s_mov_b32 s52, s30")
    k("s_mov_b32 s53, s31")
    k(f"s_mov_b32 s54, {1792 * 1024}")
    k("s_mov_b32 s55, 0x20000")
    k("s_movk_i32 s7, 3584")
    k("v_mul_lo_u32 v112, v27, s7")
    k("v_add_u32 v112, v112, v26")
    k("v_lshlrev_b32 v113, 10, v27")
    k("v_add_u32 v113, v113, v26")
    k(f"s_mul_i32 s66, s3, {64 * 3584}")
    k("s_lshl_b32 s7, s81, 7")
    k("s_add_u32 s66, s66, s7")
    k("s_lshl_b32 s67, s3, 13")
    k(f"s_add_u32 s67, s67, {L_W}")
    for e in range(8):
        k("s_mov_b32 m0, s67")
        if e >= PW:
            k(f"s_waitcnt vmcnt({PW - 1})")
        k(f"buffer_load_dwordx4 v112, s[48:51], s66 offen nt lds")
        if e < 7:
            k("s_add_u32 s66, s66, 3584")
            k("s_add_u32 s67, s67, 1024")
    k("s_lshl_b32 s66, s81, 16")
    k("s_lshl_b32 s7, s3, 7")
    k("s_add_u32 s66, s66, s7")
    k("s_lshl_b32 s67, s3, 13")
    k(f"s_add_u32 s67, s67, {65536 + L_W}")
    for e in range(8):
        k("s_mov_b32 m0, s67")
        k(f"s_waitcnt vmcnt({PW - 1})")
        k(f"buffer_load_dwordx4 v113, s[52:55], s66 offen nt lds")
        if e < 7:
            k("s_add_u32 s66, s66, 1024")
            k("s_add_u32 s67, s67, 1024")
    k.label("L_common0")
    k("s_waitcnt lgkmcnt(0)")
    k("s_barrier")
    k("s_add_u32 s6, s6, 1")
    k.label("L_common")
    k("s_lshl_b32 s66, s5, 3")
    k("s_add_u32 s66, s66, s3")
    k("s_lshl_b32 s66, s66, 13")
    k("s_add_u32 s67, s66, 0x200000")
    k(f"s_mul_i32 s59, s5, {ND}")
    k("s_add_u32 s59, s59, s3")
    k("s_add_u32 s59, s59, 512")
    k("s_lshl_b32 s59, s59, 13")
    k(f"s_cmp_lt_u32 s3, {ND}")
    k("s_cselect_b32 s64, 1, 0")
    k("s_lshr_b32 s7, s5, 3")
    k("s_add_u32 s7, s7, s3")
    k("s_and_b32 s7, s7, 3")
    k(f"s_add_u32 s62, s7, {POOL0}")
    k("s_lshl_b32 s63, s4, 2")
    k("s_add_u32 s63, s63, s7")
    k("s_lshl_b32 s63, s63, 8")
    k(f"s_add_u32 s63, s63, {WS_CNT}")
    k("v_mov_b32 v10, s63")
    k("s_mov_b32 s63, 1")
    k("s_mov_b32 s60, 1")
    k("s_mov_b32 s61, 1")
    k("s_cmp_eq_u32 s3, 0")
    k("s_cbranch_scc1 L_pollq")

    def issue_k(slot, soff, pace=None):
        for j in range(8):
            vo = "v3" if j < 4 else "v4"
            if pace is not None:
                k(f"s_waitcnt vmcnt({pace - 1})")
            k(f"buffer_load_dwordx4 a[{32 * slot + 4 * j}:{32 * slot + 4 * j + 3}], {vo}, s[40:43], {soff} offen offset:{(j % 4) * 1024} nt")

    def issue_v(slot, soff, pace=None):
        for j in range(8):
            vo = "v1" if j < 4 else "v2"
            b = 64 + 32 * slot + 4 * j
            if pace is not None:
                k(f"s_waitcnt vmcnt({pace - 1})")
            k(f"buffer_load_dwordx4 v[{b}:{b + 3}], {vo}, s[44:47], {soff} offen offset:{(j % 4) * 1024} nt")

    issue_k(0, "s66", PW)
    issue_v(0, "s66", PW)
    issue_k(1, "s67", PW)
    issue_v(1, "s67", PW)
    k("v_mov_b32 v32, 0")
    top = poll_begin()
    k(f"ds_read_b32 v33, v32 offset:{L_FLAG}")
    k("s_waitcnt lgkmcnt(0)")
    k("v_readfirstlane_b32 s65, v33")
    k("s_cmp_eq_u32 s65, 0")
    k(f"s_cbranch_scc1 {top}")
    k(f"ds_read_b128 v[12:15], v1 offset:{L_QF}")
    k("s_waitcnt lgkmcnt(0)")
    k("s_branch L_haveq")

    k.label("L_pollq")
    k("s_setprio 3")
    k("v_and_b32 v32, 3, v0")
    k("v_lshlrev_b32 v32, 9, v32")
    k("v_lshl_add_u32 v32, v28, 7, v32")
    k("v_bfe_u32 v33, v0, 2, 2")
    k("v_lshl_add_u32 v32, v33, 5, v32")
    k("s_lshl_b32 s7, s4, 11")
    k(f"s_add_u32 s7, s7, {WS_Q}")
    k("v_add_u32 v32, s7, v32")
    k("v_lshl_add_u32 v33, v0, 8, s7")
    top = poll_begin()
    k("s_mov_b64 exec, 0xff")
    k("global_load_dwordx2 v[36:37], v33, s[8:9] sc1")
    k("s_waitcnt vmcnt(0)")
    k("v_cmp_ne_u32 vcc, s6, v37")
    k("s_mov_b64 exec, -1")
    k(f"s_cbranch_vccnz {top}")
    k("global_load_dwordx4 v[36:39], v32, s[8:9] sc1")
    k("global_load_dwordx4 v[40:43], v32, s[8:9] offset:16 sc1")
    k("s_waitcnt vmcnt(0)")
    check_tags(["v37", "v39", "v41", "v43"], "v44", "v45", top)
    k("v_mov_b32 v12, v36")
    k("v_mov_b32 v13, v38")
    k("v_mov_b32 v14, v40")
    k("v_mov_b32 v15, v42")
    k(f"ds_write_b128 v1, v[12:15] offset:{L_QF}")
    k("v_mov_b32 v32, 0")
    k("s_waitcnt lgkmcnt(0)")
    k(f"ds_write_b32 v32, v11 offset:{L_FLAG}")
    k("s_setprio 0")
    issue_k(0, "s66")
    issue_v(0, "s66")
    issue_k(1, "s67")
    issue_v(1, "s67")

    k.label("L_haveq")
    stamp(2)
    k("s_waitcnt vmcnt(16)")
    k("s_branch L_entryA")

    def step(X):
        Y = 1 - X
        nm = "AB"[X]
        k.label(f"L_step{nm}")
        k(f"s_cmp_eq_u32 s{60 + X}, 0")
        k("s_cbranch_scc1 L_loopdone")
        k("s_waitcnt vmcnt(8)")
        if stamps:
            k("s_memrealtime s[92:93]")
            k("s_waitcnt lgkmcnt(0)")
            k("v_mov_b32 v30, s92")
            k("v_mov_b32 v31, s95")
            k("s_add_u32 s95, s95, 4")
            k("s_mov_b64 exec, 1")
            k("global_store_dword v31, v30, s[8:9]")
            k("s_mov_b64 exec, -1")
        k("v_readfirstlane_b32 s7, v9")
        k(f"s_cmp_lt_u32 s7, {SUBPOOL}")
        k(f"s_cselect_b32 s{60 + Y}, 1, 0")
        k("s_lshl_b32 s7, s7, 2")
        k("s_add_u32 s7, s7, s62")
        k("s_lshl_b32 s7, s7, 13")
        k("s_cmp_eq_u32 s63, 1")
        k("s_cselect_b32 s7, s59, s7")
        k(f"s_cselect_b32 s{60 + Y}, s64, s{60 + Y}")
        k("s_mov_b32 s63, 0")
        k(f"s_cmp_lg_u32 s{60 + Y}, 0")
        k(f"s_cbranch_scc1 L_refill{nm}")
        k("s_waitcnt vmcnt(0)")
        k(f"s_branch L_entry{nm}")
        k.label(f"L_refill{nm}")
        k("s_mov_b64 exec, 1")
        k("global_atomic_add v9, v10, v11, s[8:9] sc0")
        k("s_mov_b64 exec, -1")
        issue_k(Y, "s7")
        issue_v(Y, "s7")
        k.label(f"L_entry{nm}")
        for j in range(8):
            k(f"v_mfma_f32_16x16x32_bf16 v[{32 + 4 * j}:{35 + 4 * j}], a[{32 * X + 4 * j}:{32 * X + 4 * j + 3}], v[12:15], 0")
        for rnd in range(3):
            for j in range(8):
                b = j & 3
                ps = [p for p in range(4) if p != b]
                p = ps[rnd]
                n = 4 * ((b - p) % 4)
                D = 32 + 4 * j
                if rnd < 2:
                    k(f"v_add_f32_dpp v{D + b}, v{D + p}, v{D + b} row_ror:{n} row_mask:0xf bank_mask:0xf")
                else:
                    k(f"v_add_f32_dpp v{20 + (j >> 2)}, v{D + p}, v{D + b} row_ror:{n} row_mask:0xf bank_mask:0x{1 << b:x}")
        k("v_fma_f32 v22, v20, s56, -v7")
        k("v_fma_f32 v23, v21, s56, -v7")
        k("v_max_f32 v24, v22, v23")
        k("v_cmp_lt_f32 vcc, s57, v24")
        k(f"s_cbranch_vccz L_norare{nm}")
        k("s_call_b64 s[10:11], L_rare")
        k.label(f"L_norare{nm}")
        k("v_exp_f32 v22, v22")
        k("v_exp_f32 v23, v23")
        k("s_nop 0")
        k("v_cvt_pk_bf16_f32 v24, v22, v22")
        k("v_cvt_pk_bf16_f32 v25, v23, v23")
        k("v_add_f32 v8, v8, v22")
        k("v_and_b32 v16, v24, v5")
        k("v_and_b32 v17, v24, v6")
        k("v_and_b32 v18, v25, v5")
        k("v_and_b32 v19, v25, v6")
        k("v_add_f32 v8, v8, v23")
        k("s_waitcnt vmcnt(17)")
        src = 64 + 32 * X
        sets = [32, 36, 40]
        perm_frag(sets[0], src, 0)
        perm_frag(sets[1], src, 1)
        for i in range(8):
            if i + 2 < 8:
                perm_frag(sets[(i + 2) % 3], src, i + 2)
            b = sets[i % 3]
            k(f"v_mfma_f32_16x16x32_bf16 a[{64 + 4 * i}:{67 + 4 * i}], v[16:19], v[{b}:{b + 3}], a[{64 + 4 * i}:{67 + 4 * i}]")

    step(0)
    step(1)
    k("s_branch L_stepA")

    k.label("L_rare")
    k("s_nop 4")
    k("v_mul_f32 v22, s56, v20")
    k("v_mul_f32 v23, s56, v21")
    k("v_max_f32 v24, v22, v23")
    allreduce("v24", "v25", "v_max_f32", steps=("r4", "r8", "x16", "x32"))
    k("v_max_f32 v24, v24, v7")
    k("v_sub_f32 v25, v7, v24")
    k("v_exp_f32 v25, v25")
    k("v_mov_b32 v7, v24")
    k("v_sub_f32 v22, v22, v24")
    k("v_sub_f32 v23, v23, v24")
    k("v_mul_f32 v8, v8, v25")
    for r in range(4):
        k(f"v_readlane_b32 s{66 + r}, v25, {r}")
    for i in range(8):
        for r in range(4):
            k(f"v_accvgpr_read_b32 v{32 + 4 * i + r}, a{64 + 4 * i + r}")
    for i in range(8):
        for r in range(4):
            k(f"v_mul_f32 v{32 + 4 * i + r}, s{66 + r}, v{32 + 4 * i + r}")
    for i in range(8):
        for r in range(4):
            k(f"v_accvgpr_write_b32 a{64 + 4 * i + r}, v{32 + 4 * i + r}")
    k("s_nop 1")
    k("s_setpc_b64 s[10:11]")

    k.label("L_loopdone")
    k("s_nop 7")
    stamp(3)
    k("s_waitcnt vmcnt(0)")
    for i in range(32):
        k(f"v_accvgpr_read_b32 v{64 + i}, a{64 + i}")
    for i in range(8):
        b = 64 + 4 * i
        k(f"v_permlane32_swap_b32 v{b}, v{b + 2}")
        k(f"v_permlane32_swap_b32 v{b + 1}, v{b + 3}")
    for i in range(8):
        b = 64 + 4 * i
        k(f"v_add_f32 v{b}, v{b}, v{b + 2}")
        k(f"v_add_f32 v{b + 1}, v{b + 1}, v{b + 3}")
    for i in range(8):
        b = 64 + 4 * i
        k(f"v_permlane16_swap_b32 v{b}, v{b + 1}")
    for i in range(8):
        b = 64 + 4 * i
        k(f"v_add_f32 v{96 + i}, v{b}, v{b + 1}")
    allreduce("v8", "v24", "v_add_f32", steps=("r4", "r8", "x16", "x32"))
    k("v_lshlrev_b32 v32, 5, v0")
    k("s_lshl_b32 s7, s3, 11")
    k("v_add_u32 v32, s7, v32")
    k(f"ds_write_b128 v32, v[96:99] offset:{L_RED}")
    k(f"ds_write_b128 v32, v[100:103] offset:{L_RED + 16}")
    k("v_lshlrev_b32 v33, 5, v0")
    k("s_lshl_b32 s7, s3, 2")
    k("v_add_u32 v33, s7, v33")
    k("s_mov_b64 exec, 0xf")
    k(f"ds_write_b32 v33, v7 offset:{L_MM}")
    k(f"ds_write_b32 v33, v8 offset:{L_LL}")
    k("s_mov_b64 exec, -1")
    k("s_waitcnt lgkmcnt(0)")
    k("s_barrier")
    k("s_lshr_b32 s66, s3, 1")
    k("s_lshl_b32 s7, s66, 5")
    k("v_mov_b32 v33, s7")
    k(f"ds_read_b128 v[36:39], v33 offset:{L_MM}")
    k(f"ds_read_b128 v[40:43], v33 offset:{L_MM + 16}")
    k(f"ds_read_b128 v[44:47], v33 offset:{L_LL}")
    k(f"ds_read_b128 v[48:51], v33 offset:{L_LL + 16}")
    k("s_lshl_b32 s7, s3, 8")
    k("v_lshl_add_u32 v34, v0, 2, s7")
    for w in range(8):
        k(f"ds_read_b32 v{52 + w}, v34 offset:{L_RED + w * 2048}")
    k("s_waitcnt lgkmcnt(12)")
    k("v_max3_f32 v60, v36, v37, v38")
    k("s_waitcnt lgkmcnt(8)")
    k("v_max3_f32 v60, v60, v39, v40")
    k("v_max3_f32 v60, v60, v41, v42")
    k("v_max_f32 v60, v60, v43")
    for w in range(8):
        k(f"v_sub_f32 v{36 + w}, v{36 + w}, v60")
    for w in range(8):
        k(f"v_exp_f32 v{36 + w}, v{36 + w}")
    k("s_waitcnt lgkmcnt(0)")
    k("v_mul_f32 v64, v36, v52")
    k("v_mul_f32 v62, v36, v44")
    for w in range(1, 8):
        k(f"v_fmac_f32 v64, v{36 + w}, v{52 + w}")
        k(f"v_fmac_f32 v62, v{36 + w}, v{44 + w}")
    k("v_mov_b32 v65, s6")
    k("v_mov_b32 v61, s6")
    k("v_mov_b32 v63, s6")
    k("s_lshl_b32 s7, s2, 12")
    k(f"s_add_u32 s7, s7, {WS_O1}")
    k("v_lshl_add_u32 v34, v34, 1, s7")
    k("global_store_dwordx2 v34, v[64:65], s[8:9] sc1")
    k("s_and_b32 s7, s3, 1")
    k("s_cmp_lg_u32 s7, 0")
    k("s_cbranch_scc1 L_pubdone")
    k("s_lshl_b32 s7, s4, 2")
    k("s_add_u32 s7, s7, s66")
    k("s_lshl_b32 s7, s7, 5")
    k("s_add_u32 s7, s7, s5")
    k("s_lshl_b32 s7, s7, 4")
    k(f"s_add_u32 s7, s7, {WS_ML}")
    k("v_mov_b32 v34, s7")
    k("s_mov_b64 exec, 1")
    k("global_store_dwordx4 v34, v[60:63], s[8:9] sc1")
    k("s_mov_b64 exec, -1")
    k.label("L_pubdone")
    stamp(4)
    k("s_cmp_eq_u32 s80, 3")
    k("s_cbranch_scc1 L_T2")
    k("s_cmp_eq_u32 s80, 4")
    k("s_cbranch_scc1 L_MLP")
    k.label("L_end")
    k("s_endpgm")

    k.label("L_T2")
    k("s_lshl_b32 s7, s3, 13")
    k(f"s_add_u32 s7, s7, {L_W}")
    k("v_add_u32 v24, s7, v1")
    for e in range(8):
        k(f"ds_read_b128 v[{64 + 4 * e}:{67 + 4 * e}], v24 offset:{e * 1024}")
    k("s_and_b32 s66, s3, 1")
    k("s_lshr_b32 s67, s3, 1")
    k("s_lshr_b32 s68, s81, 2")
    k("s_and_b32 s69, s68, 1")
    k("s_lshl_b32 s69, s69, 1")
    k("s_add_u32 s69, s69, s66")
    k("s_lshl_b32 s7, s4, 5")
    k("s_lshl_b32 s70, s67, 3")
    k("s_add_u32 s7, s7, s70")
    k("s_lshl_b32 s7, s7, 12")
    k("s_lshl_b32 s71, s69, 10")
    k("s_add_u32 s7, s7, s71")
    k(f"s_add_u32 s7, s7, {WS_O1}")
    k("v_add_u32 v24, s7, v1")
    k("v_add_u32 v25, 0x2000, v24")
    k("v_add_u32 v26, 0x4000, v24")
    k("v_add_u32 v27, 0x6000, v24")
    k("s_lshl_b32 s7, s4, 2")
    k("s_add_u32 s7, s7, s69")
    k("s_lshl_b32 s7, s7, 9")
    k(f"s_add_u32 s7, s7, {WS_ML}")
    k("v_and_b32 v22, 31, v0")
    k("v_lshl_add_u32 v22, v22, 4, s7")
    k("s_waitcnt lgkmcnt(0)")
    for i in range(8):
        perm_frag(32 + 4 * i, 64, i)
    k("s_barrier")
    top = poll_begin()
    k("global_load_dwordx4 v[96:99], v22, s[8:9] sc1")
    for kk in range(8):
        a = ["v24", "v25", "v26", "v27"][kk >> 1]
        if kk & 1:
            k(f"v_add_u32 v23, 0x1000, {a}")
            k(f"global_load_dwordx4 v[{64 + 4 * kk}:{67 + 4 * kk}], v23, s[8:9] sc1")
        else:
            k(f"global_load_dwordx4 v[{64 + 4 * kk}:{67 + 4 * kk}], {a}, s[8:9] sc1")
    k("s_waitcnt vmcnt(0)")
    check_tags([f"v{65 + 2 * i}" for i in range(16)] + ["v97", "v99"], "v100", "v101", top)
    stamp(5)
    k("v_mov_b32 v100, v96")
    allreduce("v100", "v101", "v_max_f32", steps=("r1", "r2", "r4", "r8", "x16"))
    k("v_sub_f32 v100, v96, v100")
    k("v_exp_f32 v100, v100")
    k("v_mul_f32 v102, v100, v98")
    allreduce("v102", "v101", "v_add_f32", steps=("r1", "r2", "r4", "r8", "x16"))
    k("v_rcp_f32 v102, v102")
    k("v_mul_f32 v100, v100, v102")
    for kk in range(8):
        k(f"s_add_u32 s7, s70, {kk}")
        k(f"v_readlane_b32 s{72 + kk}, v100, s7")
    k("v_mul_f32 v104, s72, v64")
    k("v_mul_f32 v105, s72, v66")
    for kk in range(1, 8):
        k(f"v_fmac_f32 v104, s{72 + kk}, v{64 + 4 * kk}")
        k(f"v_fmac_f32 v105, s{72 + kk}, v{66 + 4 * kk}")
    k("s_lshl_b32 s7, s67, 10")
    k("s_lshl_b32 s71, s66, 9")
    k("s_add_u32 s7, s7, s71")
    k("v_lshl_add_u32 v23, v0, 3, s7")
    k(f"ds_write_b64 v23, v[104:105] offset:{L_RED}")
    k("s_lshl_b32 s7, s3, 7")
    k("v_lshl_add_u32 v23, v28, 5, s7")
    k("s_waitcnt lgkmcnt(0)")
    k("s_barrier")
    for cg in range(4):
        k(f"ds_read_b128 v[{64 + 8 * cg}:{67 + 8 * cg}], v23 offset:{L_RED + cg * 1024}")
        k(f"ds_read_b128 v[{68 + 8 * cg}:{71 + 8 * cg}], v23 offset:{L_RED + cg * 1024 + 16}")
    k("s_waitcnt lgkmcnt(0)")
    for i in range(8):
        k(f"v_add_f32 v{64 + i}, v{64 + i}, v{72 + i}")
        k(f"v_add_f32 v{80 + i}, v{80 + i}, v{88 + i}")
    for i in range(8):
        k(f"v_add_f32 v{64 + i}, v{64 + i}, v{80 + i}")
    pack8(64, 16)
    for i in range(8):
        k(f"v_mfma_f32_16x16x32_bf16 v[{64 + 4 * i}:{67 + 4 * i}], v[16:19], v[{32 + 4 * i}:{35 + 4 * i}], 0")
    k("s_lshl_b32 s7, s3, 9")
    k("v_lshl_add_u32 v23, v0, 5, s7")
    k(f"v_add_u32 v23, {L_RED2}, v23")
    k("s_mov_b64 exec, 0xffff")
    for i in range(0, 8, 2):
        k(f"ds_write2_b32 v23, v{64 + 4 * i}, v{68 + 4 * i} offset0:{i} offset1:{i + 1}")
    k("s_mov_b64 exec, -1")
    k("s_waitcnt lgkmcnt(0)")
    k("s_barrier")
    k("s_cmp_ge_u32 s3, 2")
    k("s_cbranch_scc1 L_end")
    k("s_lshl_b32 s7, s3, 8")
    k("v_lshl_add_u32 v23, v0, 2, s7")
    for w in range(8):
        k(f"ds_read_b32 v{64 + w}, v23 offset:{L_RED2 + w * 512}")
    k("s_lshl_b32 s7, s81, 10")
    k(f"s_add_u32 s7, s7, {WS_E2}")
    k("v_lshl_add_u32 v23, v23, 1, s7")
    k("v_mov_b32 v73, s6")
    k("s_waitcnt lgkmcnt(0)")
    k("v_add_f32 v64, v64, v65")
    k("v_add_f32 v66, v66, v67")
    k("v_add_f32 v68, v68, v69")
    k("v_add_f32 v70, v70, v71")
    k("v_add_f32 v64, v64, v66")
    k("v_add_f32 v68, v68, v70")
    k("v_add_f32 v72, v64, v68")
    k("global_store_dwordx2 v23, v[72:73], s[8:9] sc1")
    stamp(6)
    k("s_endpgm")

    H2 = L_RED + 4096
    T3R = L_RED + 12288
    H1 = L_RED + 14336
    k.label("L_MLP")
    k("s_lshl_b32 s7, s3, 13")
    k(f"s_add_u32 s7, s7, {L_W}")
    k("v_add_u32 v24, s7, v1")
    for e in range(8):
        k(f"ds_read_b128 v[{64 + 4 * e}:{67 + 4 * e}], v24 offset:{e * 1024}")
    k("v_add_u32 v24, 0x10000, v24")
    for e in range(8):
        k(f"ds_read_b128 v[{96 + 4 * e}:{99 + 4 * e}], v24 offset:{e * 1024}")
    k("s_waitcnt lgkmcnt(8)")
    for i in range(8):
        perm_frag(32 + 4 * i, 64, i)
    k("s_waitcnt lgkmcnt(0)")
    for i in range(8):
        perm_frag(64 + 4 * i, 96, i)
    for i in range(32):
        k(f"v_accvgpr_write_b32 a{i}, v{64 + i}")
    k("v_lshlrev_b32 v24, 5, v0")
    k(f"v_add_u32 v24, {WS_MOD + 1024 * 4}, v24")
    k("v_add_u32 v25, 0x1000, v24")
    k("s_lshl_b32 s7, s81, 7")
    k(f"s_add_u32 s7, s7, {WS_MOD + 2560 * 4}")
    k("v_lshl_add_u32 v26, v29, 3, s7")
    k("global_load_dwordx4 v[88:91], v1, s[16:17]")
    top = poll_begin()
    k("global_load_dwordx4 v[64:67], v24, s[8:9] sc1")
    k("global_load_dwordx4 v[68:71], v24, s[8:9] offset:16 sc1")
    k("global_load_dwordx4 v[72:75], v24, s[8:9] offset:2048 sc1")
    k("global_load_dwordx4 v[76:79], v24, s[8:9] offset:2064 sc1")
    k("global_load_dwordx4 v[80:83], v25, s[8:9] sc1")
    k("global_load_dwordx4 v[84:87], v25, s[8:9] offset:16 sc1")
    k("v_min_u32 v27, 0x12ff8, v26")
    k("global_load_dwordx2 v[92:93], v27, s[8:9] sc1")
    k("s_waitcnt vmcnt(0)")
    check_tags([f"v{65 + 2 * i}" for i in range(12)] + ["v93"], "v94", "v95", top)
    unpack8(88, 96)
    unpack_gr([64, 66, 68, 70], 104)
    unpack_gr([72, 74, 76, 78], 112)
    unpack_gr([80, 82, 84, 86], 120)
    for i in range(8):
        k(f"v_add_f32 v{120 + i}, 1.0, v{120 + i}")
    k("v_mov_b32 v21, v92")
    k("s_lshr_b32 s66, s3, 2")
    k("s_and_b32 s67, s3, 3")
    k("s_lshl_b32 s7, s66, 15")
    k("s_lshl_b32 s68, s67, 10")
    k("s_add_u32 s7, s7, s68")
    k(f"s_add_u32 s7, s7, {WS_E2}")
    k("v_add_u32 v24, s7, v1")
    k("v_add_u32 v25, 0x2000, v24")
    k("v_add_u32 v26, 0x4000, v24")
    k("v_add_u32 v27, 0x6000, v24")
    k("s_barrier")
    top = poll_begin()
    for kk in range(8):
        a = ["v24", "v25", "v26", "v27"][kk >> 1]
        if kk & 1:
            k(f"v_add_u32 v23, 0x1000, {a}")
            k(f"global_load_dwordx4 v[{64 + 4 * kk}:{67 + 4 * kk}], v23, s[8:9] sc1")
        else:
            k(f"global_load_dwordx4 v[{64 + 4 * kk}:{67 + 4 * kk}], {a}, s[8:9] sc1")
    k("s_waitcnt vmcnt(0)")
    check_tags([f"v{65 + 2 * i}" for i in range(16)], "v22", "v23", top)
    stamp(5)
    for kk in range(1, 8):
        k(f"v_add_f32 v64, v64, v{64 + 4 * kk}")
        k(f"v_add_f32 v66, v66, v{66 + 4 * kk}")
    k("v_mov_b32 v65, v66")
    k("s_lshl_b32 s7, s66, 11")
    k("s_lshl_b32 s68, s67, 9")
    k("s_add_u32 s7, s7, s68")
    k("v_lshl_add_u32 v23, v0, 3, s7")
    k(f"ds_write_b64 v23, v[64:65] offset:{L_RED}")
    k("v_lshlrev_b32 v23, 5, v0")
    k("s_waitcnt lgkmcnt(0)")
    k("s_barrier")
    k(f"ds_read_b128 v[64:67], v23 offset:{L_RED}")
    k(f"ds_read_b128 v[68:71], v23 offset:{L_RED + 16}")
    k(f"ds_read_b128 v[72:75], v23 offset:{L_RED + 2048}")
    k(f"ds_read_b128 v[76:79], v23 offset:{L_RED + 2064}")
    k("s_waitcnt lgkmcnt(0)")
    for i in range(8):
        k(f"v_add_f32 v{64 + i}, v{64 + i}, v{72 + i}")
    for i in range(8):
        k(f"v_fma_f32 v{64 + i}, v{104 + i}, v{64 + i}, v{96 + i}")
    k("s_cmp_lg_u32 s3, 0")
    k("s_cbranch_scc1 L_MLP_nox2")
    k(f"ds_write_b128 v23, v[64:67] offset:{L_X2}")
    k(f"ds_write_b128 v23, v[68:71] offset:{L_X2 + 16}")
    k.label("L_MLP_nox2")
    k("v_add_f32 v80, v64, v65")
    for i in range(2, 8):
        k(f"v_add_f32 v80, v80, v{64 + i}")
    allreduce("v80", "v81", "v_add_f32")
    k(f"v_mul_f32 v80, 0x{f2u(1.0 / 512):08x}, v80")
    for i in range(8):
        k(f"v_sub_f32 v{72 + i}, v{64 + i}, v80")
    k("v_mul_f32 v82, v72, v72")
    for i in range(1, 8):
        k(f"v_fmac_f32 v82, v{72 + i}, v{72 + i}")
    allreduce("v82", "v81", "v_add_f32")
    k(f"v_mov_b32 v83, 0x{f2u(1e-5):08x}")
    k(f"v_fmac_f32 v83, 0x{f2u(1.0 / 512):08x}, v82")
    k("v_rsq_f32 v83, v83")
    for i in range(8):
        k(f"v_mul_f32 v{72 + i}, v{72 + i}, v83")
    for i in range(8):
        k(f"v_fma_f32 v{72 + i}, v{72 + i}, v{120 + i}, v{112 + i}")
    pack8(72, 84)
    k("s_lshl_b32 s7, s3, 10")
    k("v_add_u32 v23, s7, v1")
    k(f"ds_write_b128 v23, v[84:87] offset:{H2}")
    k("v_and_b32 v22, 1, v0")
    k("v_lshlrev_b32 v22, 2, v22")
    k("v_add_u32 v22, v22, v28")
    k("s_mul_i32 s7, s3, 1152")
    k("v_lshl_add_u32 v22, v22, 4, s7")
    k("s_waitcnt lgkmcnt(0)")
    k(f"ds_read_b128 v[16:19], v22 offset:{H2}")
    k("s_waitcnt lgkmcnt(0)")
    for i in range(8):
        k(f"v_mfma_f32_16x16x32_bf16 v[{64 + 4 * i}:{67 + 4 * i}], v[16:19], v[{32 + 4 * i}:{35 + 4 * i}], 0")
    for i in range(8):
        k(f"v_add_f32_dpp v{96 + i}, v{64 + 4 * i + 1}, v{64 + 4 * i} row_ror:8 row_mask:0xf bank_mask:0xf")
    k("s_lshl_b32 s7, s3, 8")
    k("v_lshl_add_u32 v23, v0, 5, s7")
    k("s_mov_b64 exec, 0xff")
    k(f"ds_write_b128 v23, v[96:99] offset:{T3R}")
    k(f"ds_write_b128 v23, v[100:103] offset:{T3R + 16}")
    k("s_mov_b64 exec, -1")
    k("v_lshlrev_b32 v23, 2, v0")
    k("s_waitcnt lgkmcnt(0)")
    k("s_barrier")
    for w in range(8):
        k(f"ds_read_b32 v{64 + w}, v23 offset:{T3R + w * 256}")
    k("s_waitcnt lgkmcnt(0)")
    k("v_add_f32 v64, v64, v65")
    k("v_add_f32 v66, v66, v67")
    k("v_add_f32 v68, v68, v69")
    k("v_add_f32 v70, v70, v71")
    k("v_add_f32 v64, v64, v66")
    k("v_add_f32 v68, v68, v70")
    k("v_add_f32 v64, v64, v68")
    silu_inplace([64], [65])
    k("v_cvt_pk_bf16_f32 v64, v64, v64")
    k("s_lshl_b32 s7, s3, 7")
    k("v_lshl_add_u32 v23, v0, 1, s7")
    k(f"ds_write_b16 v23, v64 offset:{H1}")
    k("v_and_b32 v22, 1, v0")
    k("v_lshlrev_b32 v22, 2, v22")
    k("v_add_u32 v22, v22, v28")
    k("v_lshl_add_u32 v22, v22, 4, s7")
    k("s_waitcnt lgkmcnt(0)")
    k(f"ds_read_b128 v[16:19], v22 offset:{H1}")
    for i in range(8):
        k(f"v_mov_b32 v{97 + 2 * i}, s6")
    k("s_lshl_b32 s7, s81, 12")
    k("s_lshl_b32 s68, s3, 9")
    k("s_add_u32 s7, s7, s68")
    k(f"s_add_u32 s7, s7, {WS_E3}")
    k("v_lshl_add_u32 v23, v0, 6, s7")
    k("s_waitcnt lgkmcnt(0)")
    for i in range(8):
        k(f"v_mfma_f32_16x16x32_bf16 v[{64 + 4 * i}:{67 + 4 * i}], v[16:19], a[{4 * i}:{4 * i + 3}], 0")
    for i in range(8):
        k(f"v_add_f32_dpp v{96 + 2 * i}, v{64 + 4 * i + 1}, v{64 + 4 * i} row_ror:8 row_mask:0xf bank_mask:0xf")
    k("s_mov_b64 exec, 0xff")
    for i in range(4):
        k(f"global_store_dwordx4 v23, v[{96 + 4 * i}:{99 + 4 * i}], s[8:9] offset:{16 * i} sc1")
    k("s_mov_b64 exec, -1")
    stamp(6)
    k("s_cmp_lg_u32 s3, 0")
    k("s_cbranch_scc1 L_end")
    k("s_cmp_ge_u32 s81, 16")
    k("s_cbranch_scc1 L_end")
    k("s_lshl_b32 s7, s81, 7")
    k("v_lshl_add_u32 v22, v29, 3, s7")
    k(f"ds_read_b64 v[112:113], v22 offset:{L_X2}")
    k("v_lshlrev_b32 v24, 1, v22")
    k("v_lshl_add_u32 v24, v28, 12, v24")
    k(f"v_add_u32 v24, {WS_E3}, v24")
    top = poll_begin()
    for kk in range(7):
        k(f"v_add_u32 v23, {kk * 16384}, v24")
        k(f"global_load_dwordx4 v[{64 + 4 * kk}:{67 + 4 * kk}], v23, s[8:9] sc1")
    k("s_waitcnt vmcnt(0)")
    check_tags([f"v{65 + 2 * i}" for i in range(14)], "v100", "v101", top)
    stamp(7)
    for kk in range(1, 7):
        k(f"v_add_f32 v64, v64, v{64 + 4 * kk}")
        k(f"v_add_f32 v66, v66, v{66 + 4 * kk}")
    allreduce("v64", "v65", "v_add_f32", steps=("x16", "x32"))
    allreduce("v66", "v65", "v_add_f32", steps=("x16", "x32"))
    k("v_lshlrev_b32 v68, 16, v21")
    k("v_and_b32 v69, 0xffff0000, v21")
    k("s_waitcnt lgkmcnt(0)")
    k("v_fma_f32 v64, v68, v64, v112")
    k("v_fma_f32 v66, v69, v66, v113")
    k("v_cvt_pk_bf16_f32 v64, v64, v66")
    k("v_lshrrev_b32 v22, 1, v22")
    k("s_mov_b64 exec, 0xffff")
    k("global_store_dword v22, v64, s[36:37]")
    k("s_mov_b64 exec, -1")
    k("s_cmp_lg_u32 s81, 0")
    k("s_cbranch_scc1 L_end2")
    k("v_mov_b32 v22, 0")
    k("v_mov_b32 v23, s6")
    k("s_mov_b64 exec, 1")
    k("global_store_dword v22, v23, s[8:9]")
    k("s_mov_b64 exec, -1")
    k.label("L_end2")
    stamp(8)
    k("s_endpgm")

    k.raw('.section .rodata,"a"')
    k.raw(".p2align 6")
    k.raw(f".amdhsa_kernel {NAME}_kernel")
    k.raw("  .amdhsa_next_free_vgpr 224")
    k.raw("  .amdhsa_next_free_sgpr 100")
    k.raw("  .amdhsa_accum_offset 128")
    k.raw("  .amdhsa_group_segment_fixed_size 0")
    k.raw("  .amdhsa_kernarg_size 104")
    k.raw("  .amdhsa_user_sgpr_count 2")
    k.raw("  .amdhsa_user_sgpr_kernarg_segment_ptr 1")
    k.raw("  .amdhsa_system_sgpr_workgroup_id_x 1")
    k.raw(".end_amdhsa_kernel")
    return k.text()


if __name__ == "__main__":
    out = sys.argv[1] if len(sys.argv) > 1 else f"cdna_kernels/{NAME}.s"
    st = "--stamps" in sys.argv
    kw = {}
    for a in sys.argv[2:]:
        if "=" in a:
            kk, vv = a.split("=")
            kw[kk] = int(vv)
    open(out, "w").write(gen(stamps=st, **kw))
    print("wrote", out)
```
